```python
import torch

def _softmax(x, axis=-1):
    return torch.softmax(x, dim=axis)

def _gelu(x):
    return torch.nn.functional.gelu(x, approximate='tanh')

def _silu(x):
    return torch.nn.functional.silu(x)

def _sigmoid(x):
    return torch.sigmoid(x)

def _layernorm(x, axis=-1, eps=1e-05):
    m = x.mean(dim=axis, keepdim=True)
    v = x.var(dim=axis, keepdim=True, unbiased=False)
    return (x - m) / torch.sqrt(v + eps)

def _scatter_add(tgt, idx, src, axis=0):
    return tgt.clone().index_add_(axis, idx, src)

def _segment_sum(src, seg, n):
    out = torch.zeros((n,) + src.shape[1:], dtype=src.dtype)
    return out.index_add_(0, seg, src)

def _pad(x, pw):
    flat = tuple((v for pair in reversed(pw) for v in pair))
    return torch.nn.functional.pad(x, flat)
kernel_name = 'parallel_sum__memory_aug_recurrent_mem_tr__dense_activation_gelu__prompt'

def setup_inputs():

    _w = lambda a: (lambda t: t.to(torch.bfloat16) if t.is_floating_point() else t)(torch.as_tensor(a))

    def _A_setup():
        B, S, Dm = (1, 2048, 448)
        H, Dh = (16, 256)
        M, seg = (8, 32)
        seg = min(seg, S)
        S = S // seg * seg
        return {'x': _w((lambda *s: torch.randn(*s, dtype=torch.bfloat16) * 0.05)(B, S, Dm)), 'mem0': _w((lambda *s: torch.randn(*s, dtype=torch.bfloat16) * 0.2)(B, M, Dm)), 'Wq': _w((lambda *s: torch.randn(*s, dtype=torch.bfloat16) * 1.6)(Dm, H, Dh) * Dm ** (-0.5)), 'Wk': _w((lambda *s: torch.randn(*s, dtype=torch.bfloat16) * 1.6)(Dm, H, Dh) * Dm ** (-0.5)), 'Wv': _w((lambda *s: torch.randn(*s, dtype=torch.bfloat16) * 0.2)(Dm, H, Dh) * Dm ** (-0.5)), 'Wo': _w((lambda *s: torch.randn(*s, dtype=torch.bfloat16) * 0.2)(H, Dh, Dm) * (H * Dh) ** (-0.5)), 'seg_len': seg}
    _A_in = _A_setup()

    def _B_setup():
        B, S, D, F = (1, 2048, 448, 1792)
        return {'x': _w((lambda *s: torch.randn(*s, dtype=torch.bfloat16) * 0.05)(B, S, D)), 'w1': _w((lambda *s: torch.randn(*s, dtype=torch.bfloat16) * 0.4)(D, F) * D ** (-0.5)), 'b1': _w((lambda *s: torch.randn(*s, dtype=torch.bfloat16) * 12.8)(F) * 0.01), 'w2': _w((lambda *s: torch.randn(*s, dtype=torch.bfloat16) * 0.1)(F, D) * F ** (-0.5)), 'b2': _w((lambda *s: torch.randn(*s, dtype=torch.bfloat16) * 1.6)(D) * 0.01)}
    _B_in = _B_setup()
    return {'A_x': _A_in['x'], 'A_mem0': _A_in['mem0'], 'A_Wq': _A_in['Wq'], 'A_Wk': _A_in['Wk'], 'A_Wv': _A_in['Wv'], 'A_Wo': _A_in['Wo'], 'A_seg_len': _A_in['seg_len'], 'B_x': _B_in['x'], 'B_w1': _B_in['w1'], 'B_b1': _B_in['b1'], 'B_w2': _B_in['w2'], 'B_b2': _B_in['b2']}

def reference(A_x, A_mem0, A_Wq, A_Wk, A_Wv, A_Wo, A_seg_len, B_x, B_w1, B_b1, B_w2, B_b2):

    def _A_ref(x, mem0, Wq, Wk, Wv, Wo, seg_len):
        B, S, Dm = x.shape
        H, Dh = (Wq.shape[1], Wq.shape[2])
        M = mem0.shape[1]
        scale = Dh ** (-0.5)
        n_seg = S // seg_len
        L = M + seg_len
        idx = torch.arange(L)
        mask = (idx[:, None] < M) | (idx[:, None] >= idx[None, :])
        mem = mem0
        outs = []
        for s in range(n_seg):
            xs = x[:, s * seg_len:(s + 1) * seg_len, :].clone()
            h = torch.concatenate([mem, xs], axis=1)
            q = torch.einsum('btd,dhe->bhte', h, Wq)
            k = torch.einsum('btd,dhe->bhte', h, Wk)
            v = torch.einsum('btd,dhe->bhte', h, Wv)
            scores = torch.einsum('bhqe,bhke->bhqk', q, k) * scale
            scores = torch.where(mask[None, None], scores, -1000000000.0)
            p = _softmax(scores, axis=-1)
            o = torch.einsum('bhqk,bhke->bhqe', p, v)
            o = torch.einsum('bhte,hed->btd', o, Wo)
            mem = o[:, :M, :].clone()
            outs.append(o[:, M:, :])
        return torch.concatenate(outs, axis=1)

    def _B_ref(x, w1, b1, w2, b2):
        h = torch.einsum('bsd,df->bsf', x, w1) + b1
        h = _gelu(h)
        return torch.einsum('bsf,fd->bsd', h, w2) + b2
    x = A_x
    xn = _layernorm(x, axis=-1)
    return x + _A_ref(xn, A_mem0, A_Wq, A_Wk, A_Wv, A_Wo, A_seg_len) + _B_ref(xn, B_w1, B_b1, B_w2, B_b2)
```

```python
import sys
NAME = "parallel_sum__memory_aug_recurrent_mem_tr__dense_activation_gelu__prompt"
HDR = open('cdna_kernels/%s.s.ref' % NAME).read().split('; Override launch')[0]

XN=0; WALL=0x200000; WOT=0x1000000; W2T=0x1400000; XA=0x1600000; XBT=0x3200000
G=0x4E00000; MEMS=0x5500000; PS=0x5600000; MEMB=0x5700000
WS_SIZE=0x10000000
TAG=0x5A5A
LROW=912

out=[]
def e(s): out.append("    "+s)
def lab(s): out.append(s+":")

def magic(d): return (2**32 + d - 1)//d

def srd(dst, slot, size, tmp=None):
    e(f"s_load_dwordx2 s[{dst}:{dst+1}], s[0:1], {slot*8}")
    e(f"s_mov_b32 s{dst+2}, {size}")
    e(f"s_mov_b32 s{dst+3}, 0x00020000")

def kernel_begin(name):
    out.append(f".globl {name}")
    out.append(".p2align 8")
    out.append(f".type {name},@function")
    lab(name)

kds=[]
def kernel_end(name, vgpr, accum, sgpr=102):
    e("s_endpgm")
    kds.append(f""".p2align 6
.amdhsa_kernel {name}
  .amdhsa_next_free_vgpr {vgpr}
  .amdhsa_next_free_sgpr {sgpr}
  .amdhsa_accum_offset {accum}
  .amdhsa_group_segment_fixed_size 0
  .amdhsa_kernarg_size 120
  .amdhsa_user_sgpr_count 2
  .amdhsa_user_sgpr_kernarg_segment_ptr 1
  .amdhsa_system_sgpr_workgroup_id_x 1
.end_amdhsa_kernel""")

def wave_id(sdst, vt=1):
    e(f"v_lshrrev_b32 v{vt}, 6, v0")
    e("s_nop 0")
    e(f"v_readfirstlane_b32 s{sdst}, v{vt}")
    e("v_and_b32 v0, 63, v0")
    e("s_nop 2")

def swz_reduce(op, v, t, masks=(0x041F,0x081F,0x101F,0x201F,0x401F)):
    for m in masks:
        e(f"ds_swizzle_b32 v{t}, v{v} offset:{hex(m)}")
        e("s_waitcnt lgkmcnt(0)")
        e(f"{op} v{v}, v{v}, v{t}")

def full_reduce_add(v, t, s0):
    swz_reduce("v_add_f32", v, t)
    e("s_nop 1")
    e(f"v_readlane_b32 s{s0}, v{v}, 0")
    e(f"v_readlane_b32 s{s0+1}, v{v}, 32")
    e("s_nop 1")
    e(f"v_mov_b32 v{v}, s{s0}")
    e(f"v_add_f32 v{v}, s{s0+1}, v{v}")

def rnd(v):
    e(f"v_cvt_pk_bf16_f32 v{v}, v{v}, v{v}")
    e(f"v_lshlrev_b32 v{v}, 16, v{v}")

N_LN=2048; N_WO=3584; N_W1=1568; N_W2=1568
ZSTART=MEMS+14336; ZEND=PS+655360; N_Z=(ZEND-ZSTART)//1024; N_S0=14
K1_WAVES=N_LN+N_WO+N_W1+N_W2+N_Z+N_S0
assert K1_WAVES%4==0
K1_WGS=K1_WAVES//4

def k1():
    kernel_begin("prep_kernel")
    e(f"s_cmp_ge_u32 s2, {K1_WGS}")
    e("s_cbranch_scc1 K1_done")
    srd(8, 14, WS_SIZE)
    wave_id(4)
    e("s_lshl_b32 s5, s2, 2")
    e("s_add_u32 s5, s5, s4")
    e(f"s_cmp_ge_u32 s5, {N_LN}")
    e("s_cbranch_scc1 K1_notln")
    srd(12, 0, 1835008)
    e("s_mul_i32 s6, s5, 896")
    e("v_lshlrev_b32 v1, 4, v0")
    for i in range(4): e(f"v_mov_b32 v{4+i}, 0")
    e("v_mov_b32 v20, 0")
    e("v_mov_b32 v21, 0")
    e("s_waitcnt lgkmcnt(0)")
    e("v_cmp_gt_u32 vcc, 56, v0")
    e("s_and_saveexec_b64 s[20:21], vcc")
    e("buffer_load_dwordx4 v[4:7], v1, s[12:15], s6 offen")
    e("s_waitcnt vmcnt(0)")
    for i in range(4):
        e(f"v_lshlrev_b32 v{8+2*i}, 16, v{4+i}")
        e(f"v_and_b32 v{9+2*i}, 0xffff0000, v{4+i}")
    for i in range(8): e(f"v_add_f32 v20, v20, v{8+i}")
    e("s_mov_b64 exec, s[20:21]")
    full_reduce_add(20, 22, 24)
    e("v_mul_f32 v20, 0x3b124925, v20")
    e("s_and_saveexec_b64 s[20:21], vcc")
    for i in range(8):
        e(f"v_sub_f32 v22, v{8+i}, v20")
        e(f"v_fmac_f32 v21, v22, v22")
    e("s_mov_b64 exec, s[20:21]")
    full_reduce_add(21, 22, 24)
    e("v_mul_f32 v21, 0x3b124925, v21")
    rnd(20); rnd(21)
    e("v_add_f32 v21, 0x3727c5ac, v21")
    rnd(21)
    e("v_sqrt_f32 v21, v21")
    e("s_nop 0")
    rnd(21)
    e("v_rcp_f32 v21, v21")
    e("s_nop 0")
    for i in range(8):
        e(f"v_sub_f32 v{8+i}, v{8+i}, v20")
        rnd(8+i)
        e(f"v_mul_f32 v{8+i}, v{8+i}, v21")
    for i in range(4): e(f"v_cvt_pk_bf16_f32 v{4+i}, v{8+2*i}, v{9+2*i}")
    e("s_and_saveexec_b64 s[20:21], vcc")
    e("buffer_store_dwordx4 v[4:7], v1, s[8:11], s6 offen")
    e("s_branch K1_done")
    lab("K1_notln")
    e(f"s_sub_u32 s5, s5, {N_LN}")
    def tr_setup(slot, size, C, ncb, rblk_shift, dst, nxt, cnt):
        e(f"s_cmp_ge_u32 s5, {cnt}")
        e(f"s_cbranch_scc1 {nxt}")
        srd(12, slot, size)
        e(f"s_mov_b32 s16, {C*2}")
        e(f"s_mov_b32 s17, {magic(ncb)}")
        e(f"s_mov_b32 s18, {ncb}")
        e(f"s_mov_b32 s19, {rblk_shift}")
        e(f"s_mov_b32 s22, {dst}")
        e("s_branch K1_tr")
        lab(nxt)
        e(f"s_sub_u32 s5, s5, {cnt}")
    tr_setup(5, 3670016, 448, 7, 8, WOT, "K1_t1", N_WO)
    tr_setup(8, 1605632, 1792, 28, 31, WALL+14336*896, "K1_t2", N_W1)
    tr_setup(10, 1605632, 448, 7, 30, W2T, "K1_t3", N_W2)
    e(f"s_cmp_ge_u32 s5, {N_Z}")
    e("s_cbranch_scc1 K1_s0")
    e("s_lshl_b32 s6, s5, 10")
    e(f"s_add_u32 s6, s6, {ZSTART}")
    e("v_lshlrev_b32 v1, 4, v0")
    for i in range(4): e(f"v_mov_b32 v{4+i}, 0")
    e("s_waitcnt lgkmcnt(0)")
    e("buffer_store_dwordx4 v[4:7], v1, s[8:11], s6 offen")
    e("s_branch K1_done")
    lab("K1_s0")
    e(f"s_sub_u32 s5, s5, {N_Z}")
    srd(12, 1, 7168)
    e("v_lshrrev_b32 v1, 3, v0")
    e("v_mul_u32_u24 v1, 896, v1")
    e("v_and_b32 v2, 7, v0")
    e("v_lshlrev_b32 v2, 3, v2")
    e("v_add_u32 v1, v1, v2")
    e("s_lshl_b32 s6, s5, 6")
    e("s_waitcnt lgkmcnt(0)")
    e("buffer_load_dwordx2 v[4:5], v1, s[12:15], s6 offen")
    e("s_waitcnt vmcnt(0)")
    e("v_lshlrev_b32 v8, 16, v4"); e("v_and_b32 v9, 0xffff0000, v4")
    e("v_lshlrev_b32 v10, 16, v5"); e("v_and_b32 v11, 0xffff0000, v5")
    for i in range(4): e(f"v_or_b32 v{8+i}, {TAG}, v{8+i}")
    e("v_lshlrev_b32 v1, 4, v0")
    e("s_lshl_b32 s6, s5, 10")
    e(f"s_add_u32 s6, s6, {MEMS}")
    e("buffer_store_dwordx4 v[8:11], v1, s[8:11], s6 offen")
    e("s_branch K1_done")
    lab("K1_tr")
    e("s_mul_hi_u32 s23, s5, s17")
    e("s_mul_i32 s24, s23, s18")
    e("s_sub_u32 s24, s5, s24")
    e("s_lshl_b32 s23, s23, 3")
    e("s_lshl_b32 s24, s24, 6")
    e("v_add_u32 v1, s24, v0")
    e("v_lshlrev_b32 v2, 1, v1")
    e("s_mul_i32 s25, s23, s16")
    e("s_waitcnt lgkmcnt(0)")
    for i in range(8):
        e(f"buffer_load_ushort v{4+i}, v2, s[12:15], s25 offen")
        e("s_add_u32 s25, s25, s16")
    e("s_cmp_eq_u32 s19, 8")
    e("s_cbranch_scc0 K1_tr_b")
    e("s_lshr_b32 s26, s23, 8")
    e("s_mul_i32 s26, s26, 229376")
    e("s_and_b32 s27, s23, 255")
    e("s_lshl_b32 s27, s27, 1")
    e("s_add_u32 s26, s26, s27")
    e("s_mov_b32 s27, 512")
    e("s_branch K1_tr_c")
    lab("K1_tr_b")
    e("s_lshl_b32 s26, s23, 1")
    e("s_mov_b32 s27, 896")
    e("s_cmp_eq_u32 s19, 31")
    e("s_cbranch_scc1 K1_tr_c")
    e("s_mov_b32 s27, 3584")
    lab("K1_tr_c")
    e("s_add_u32 s26, s26, s22")
    e("v_mul_lo_u32 v3, v1, s27")
    e("s_waitcnt vmcnt(0)")
    for i in range(4): e(f"v_lshl_or_b32 v{12+i}, v{5+2*i}, 16, v{4+2*i}")
    e("buffer_store_dwordx4 v[12:15], v3, s[8:11], s26 offen")
    lab("K1_done")
    kernel_end("prep_kernel", 32, 32)

def k2():
    kernel_begin("wprod_kernel")
    e("s_cmp_ge_u32 s2, 128")
    e("s_cbranch_scc1 K2_done")
    srd(8, 14, WS_SIZE)
    wave_id(4)
    e("s_lshr_b32 s5, s2, 6")
    e("s_lshr_b32 s6, s2, 2"); e("s_and_b32 s6, s6, 15")
    e("s_and_b32 s7, s2, 3")
    e("s_cmp_eq_u32 s5, 0")
    e("s_cbranch_scc0 K2_b")
    srd(12, 2, 3670016); srd(16, 3, 3670016)
    e("s_mov_b32 s20, 8192"); e("s_lshl_b32 s21, s6, 9")
    e("s_branch K2_c")
    lab("K2_b")
    srd(12, 4, 3670016); srd(16, 14, WS_SIZE)
    e("s_mov_b32 s20, 512"); e("s_mul_i32 s21, s6, 229376"); e(f"s_add_u32 s21, s21, {WOT}")
    lab("K2_c")
    e("v_and_b32 v1, 15, v0"); e("v_lshrrev_b32 v2, 4, v0")
    e("s_mul_i32 s22, s7, 112")
    e("v_add_u32 v3, s22, v1")
    e("v_lshlrev_b32 v3, 13, v3")
    e("s_lshl_b32 s23, s6, 9")
    e("v_lshl_add_u32 v3, v2, 4, v3")
    e("v_add_u32 v3, s23, v3")
    e("s_mul_i32 s23, s4, 112")
    e("v_add_u32 v4, s23, v1")
    e("v_mul_lo_u32 v5, v4, s20")
    e("v_lshl_add_u32 v5, v2, 4, v5")
    e("v_add_u32 v5, s21, v5")
    e("s_lshl_b32 s24, s20, 4")
    for i in range(7):
        e(f"v_add_u32 v{6+i}, {i*131072}, v3")
        if i==0: e("v_mov_b32 v130, v5")
        else: e(f"v_add_u32 v{130+i}, s24, v{129+i}")
    for k in range(196): e(f"v_accvgpr_write_b32 a{k}, 0")
    e("s_waitcnt lgkmcnt(0)")
    def ld(j, st):
        for i in range(7): e(f"buffer_load_dwordx4 v[{16+st*28+4*i}:{19+st*28+4*i}], v{6+i}, s[12:15], 0 offen offset:{j*64}")
        for i in range(7): e(f"buffer_load_dwordx4 v[{72+st*28+4*i}:{75+st*28+4*i}], v{130+i}, s[16:19], 0 offen offset:{j*64}")
    ld(0,0)
    for j in range(8):
        st=j&1
        if j<7:
            ld(j+1, st^1); e("s_waitcnt vmcnt(14)")
        else: e("s_waitcnt vmcnt(0)")
        for i in range(7):
            for n in range(7):
                a=(i*7+n)*4
                e(f"v_mfma_f32_16x16x32_bf16 a[{a}:{a+3}], v[{16+st*28+4*i}:{19+st*28+4*i}], v[{72+st*28+4*n}:{75+st*28+4*n}], a[{a}:{a+3}]")
    e("s_nop 7"); e("s_nop 7")
    e("s_mul_i32 s25, s5, 7168"); e("s_mul_i32 s26, s6, 448"); e("s_add_u32 s25, s25, s26")
    e("v_add_u32 v4, s25, v4")
    e("v_mul_u32_u24 v4, 896, v4")
    e("v_lshl_add_u32 v4, v2, 3, v4")
    e("s_lshl_b32 s22, s22, 1"); e(f"s_add_u32 s22, s22, {WALL}")
    e("v_add_u32 v4, s22, v4")
    for n in range(7):
        for i in range(7):
            a=(i*7+n)*4
            for r in range(4): e(f"v_accvgpr_read_b32 v{140+r}, a{a+r}")
            e("v_cvt_pk_bf16_f32 v144, v140, v141"); e("v_cvt_pk_bf16_f32 v145, v142, v143")
            e(f"buffer_store_dwordx2 v[144:145], v4, s[8:11], 0 offen offset:{i*32}")
            e("s_nop 1")
        e("v_add_u32 v4, 14336, v4")
    lab("K2_done")
    kernel_end("wprod_kernel", 160+196, 160)

def k3():
    kernel_begin("gemm_kernel")
    e("s_cmp_ge_u32 s2, 256")
    e("s_cbranch_scc1 K3_done")
    srd(8, 14, WS_SIZE); srd(12, 9, 3584)
    wave_id(4)
    e("s_lshr_b32 s5, s2, 4"); e("s_and_b32 s6, s2, 15")
    e("s_lshl_b32 s7, s5, 7"); e("s_lshl_b32 s16, s4, 5"); e("s_add_u32 s7, s7, s16")
    e("s_mul_i32 s7, s7, 896")
    e("v_lshlrev_b32 v1, 4, v0")
    e("s_mul_i32 s16, s16, %d"%LROW)
    e("v_add_u32 v2, s16, v1")
    e("s_waitcnt lgkmcnt(0)")
    e("v_cmp_gt_u32 vcc, 56, v0")
    e("s_and_saveexec_b64 s[20:21], vcc")
    for r in range(32):
        e(f"buffer_load_dwordx4 v[{8+4*r}:{11+4*r}], v1, s[8:11], s7 offen")
        e("s_add_u32 s7, s7, 896")
    for r in range(32):
        e(f"s_waitcnt vmcnt({31-r})")
        e(f"ds_write_b128 v2, v[{8+4*r}:{11+4*r}] offset:{r*LROW}")
    e("s_mov_b64 exec, s[20:21]")
    e("s_waitcnt lgkmcnt(0)")
    e("s_barrier")
    e("v_and_b32 v1, 15, v0"); e("v_lshrrev_b32 v2, 4, v0")
    e(f"v_mul_u32_u24 v3, {LROW}, v1"); e("v_lshl_add_u32 v3, v2, 4, v3")
    e(f"v_add_u32 v137, {64*LROW}, v3"); e("s_lshl_b32 s7, s6, 2")
    e("s_add_u32 s30, s7, 4")
    e("s_min_u32 s30, s30, 63")
    lab("K3_pass")
    e("s_lshl_b32 s16, s7, 8"); e("s_lshl_b32 s17, s4, 6"); e("s_add_u32 s16, s16, s17")
    e("v_add_u32 v4, s16, v1")
    e("v_mul_u32_u24 v4, 896, v4")
    e("v_lshl_add_u32 v4, v2, 4, v4")
    e(f"v_add_u32 v4, {WALL}, v4")
    for t in range(1,4): e(f"v_add_u32 v{4+t}, {t*14336}, v4")
    for k in range(128): e(f"v_accvgpr_write_b32 a{k}, 0")
    e("s_cmp_ge_u32 s7, 28"); e("s_cbranch_scc0 K3_sw")
    e("s_cmp_ge_u32 s7, 56"); e("s_cbranch_scc0 K3_ns")
    lab("K3_sw")
    def body(sw):
        def ld(j, st):
            for t in range(4): e(f"buffer_load_dwordx4 v[{8+st*16+4*t}:{11+st*16+4*t}], v{4+t}, s[8:11], 0 offen offset:{j*64}")
            for i in range(8): e(f"ds_read_b128 v[{40+st*32+4*i}:{43+st*32+4*i}], v{3 if i<4 else 137} offset:{(i&3)*16*LROW+j*64}")
        ld(0,0)
        for j in range(14):
            st=j&1
            if j<13: ld(j+1, st^1); e("s_waitcnt vmcnt(4) lgkmcnt(8)")
            else: e("s_waitcnt vmcnt(0) lgkmcnt(0)")
            for i in range(8):
                for t in range(4):
                    a=(i*4+t)*4
                    w=f"v[{8+st*16+4*t}:{11+st*16+4*t}]"; x=f"v[{40+st*32+4*i}:{43+st*32+4*i}]"
                    A,B=(w,x) if sw else (x,w)
                    e(f"v_mfma_f32_16x16x32_bf16 a[{a}:{a+3}], {A}, {B}, a[{a}:{a+3}]")
        e("s_nop 7"); e("s_nop 7")
    body(True)
    e("s_lshl_b32 s17, s5, 7")
    e("v_add_u32 v104, s17, v1")
    e("s_cmp_ge_u32 s7, 56"); e("s_cbranch_scc1 K3_epG")
    e("v_mul_u32_u24 v104, 14336, v104")
    e("v_lshl_add_u32 v104, v2, 3, v104")
    e("s_lshl_b32 s17, s16, 1"); e(f"s_add_u32 s17, s17, {XA}")
    e("v_add_u32 v104, s17, v104")
    for i in range(8):
        for t in range(4):
            a=(i*4+t)*4
            for r in range(4): e(f"v_accvgpr_read_b32 v{106+r}, a{a+r}")
            e("v_cvt_pk_bf16_f32 v110, v106, v107"); e("v_cvt_pk_bf16_f32 v111, v108, v109")
            e(f"buffer_store_dwordx2 v[110:111], v104, s[8:11], 0 offen offset:{t*32}")
            e("s_nop 1")
        e(f"v_add_u32 v104, {16*14336}, v104")
    e("s_branch K3_next")
    lab("K3_epG")
    e("s_sub_u32 s16, s16, 14336")
    e("v_mul_u32_u24 v104, 3584, v104")
    e("v_lshl_add_u32 v104, v2, 3, v104")
    e("s_lshl_b32 s17, s16, 1"); e(f"s_add_u32 s18, s17, {G}")
    e("v_add_u32 v104, s18, v104")
    e("v_lshlrev_b32 v105, 3, v2")
    for t in range(4): e(f"buffer_load_dwordx2 v[{112+2*t}:{113+2*t}], v105, s[12:15], s17 offen offset:{t*32}")
    e("s_waitcnt vmcnt(0)")
    for t in range(4):
        for q in range(2):
            e(f"v_lshlrev_b32 v{120+4*t+2*q}, 16, v{112+2*t+q}")
            e(f"v_and_b32 v{121+4*t+2*q}, 0xffff0000, v{112+2*t+q}")
    for i in range(8):
        for t in range(4):
            a=(i*4+t)*4
            for r in range(4):
                v=106+r
                e(f"v_accvgpr_read_b32 v{v}, a{a+r}")
                rnd(v)
                e(f"v_add_f32 v{v}, v{v}, v{120+4*t+r}")
                rnd(v)
                e(f"v_mul_f32 v136, v{v}, v{v}")
                e(f"v_fma_f32 v136, v136, s28, 1.0" if False else f"v_mul_f32 v136, 0x3d372713, v136")
                e(f"v_add_f32 v136, 1.0, v136")
                e(f"v_mul_f32 v136, v136, v{v}")
                e(f"v_mul_f32 v136, 0xc0135761, v136")
                e(f"v_exp_f32 v136, v136")
                e("s_nop 0")
                e(f"v_add_f32 v136, 1.0, v136")
                e(f"v_rcp_f32 v136, v136")
                e("s_nop 0")
                e(f"v_mul_f32 v{v}, v{v}, v136")
            e("v_cvt_pk_bf16_f32 v110, v106, v107"); e("v_cvt_pk_bf16_f32 v111, v108, v109")
            e(f"buffer_store_dwordx2 v[110:111], v104, s[8:11], 0 offen offset:{t*32}")
            e("s_nop 1")
        e(f"v_add_u32 v104, {16*3584}, v104")
    e("s_branch K3_next")
    lab("K3_ns")
    body(False)
    e("s_sub_u32 s16, s16, 7168"); e("s_lshr_b32 s16, s16, 6")
    e(f"s_mul_hi_u32 s17, s16, {magic(7)}" if False else f"s_mov_b32 s18, {magic(7)}")
    e("s_mul_hi_u32 s17, s16, s18")
    e("s_mul_i32 s18, s17, 7"); e("s_sub_u32 s18, s16, s18"); e("s_lshl_b32 s18, s18, 2")
    e("s_lshl_b32 s19, s5, 2"); e("s_mul_i32 s19, s19, 28"); e("s_add_u32 s19, s19, s18")
    e("s_lshl_b32 s19, s19, 4"); e("s_add_u32 s19, s19, s17"); e("s_lshl_b32 s19, s19, 10")
    e(f"s_add_u32 s19, s19, {XBT}")
    e("v_lshlrev_b32 v104, 6, v1"); e("v_lshl_add_u32 v104, v2, 3, v104")
    for i in range(8):
        for t in range(4):
            a=(i*4+t)*4
            off=(i>>1)*28*16384 + t*16384 + (i&1)*32
            e(f"s_add_u32 s22, s19, {off}")
            for r in range(4): e(f"v_accvgpr_read_b32 v{106+r}, a{a+r}")
            e("v_cvt_pk_bf16_f32 v110, v106, v107"); e("v_cvt_pk_bf16_f32 v111, v108, v109")
            e(f"buffer_store_dwordx2 v[110:111], v104, s[8:11], s22 offen")
            e("s_nop 1")
    lab("K3_next")
    e("s_add_u32 s7, s7, 1"); e("s_cmp_lt_u32 s7, s30"); e("s_cbranch_scc1 K3_pass")
    lab("K3_done")
    kernel_end("gemm_kernel", 140+128, 140)

def poll_mem(pfx, sslot):
    lab(f"{pfx}_poll")
    for k in range(4):
        e(f"s_add_u32 s28, s{sslot}, s{34+k}")
        e(f"buffer_load_dwordx4 v[{4+4*k}:{7+4*k}], v2, s[8:11], s28 offen sc1")
    e("s_waitcnt vmcnt(0)")
    e("v_and_b32 v20, v4, v5")
    for k in range(2,16): e(f"v_and_b32 v20, v20, v{4+k}")
    e("v_and_b32 v20, 0xffff, v20")
    e(f"v_cmp_ne_u32 vcc, {TAG}, v20")
    e("s_add_u32 s42, s42, 1"); e("s_cmp_gt_u32 s42, 0x400000"); e("s_cbranch_scc1 %s_pout"%pfx)
    e("s_cbranch_vccnz %s_poll"%pfx)
    lab(pfx+"_pout")
    for k in range(4):
        e(f"v_perm_b32 v20, v{5+4*k}, v{4+4*k}, s29")
        e(f"v_perm_b32 v21, v{7+4*k}, v{6+4*k}, s29")
        e(f"v_add_u32 v22, s{38+k}, v3")
        e("ds_write_b64 v22, v[20:21]")

def chain_common_setup():
    e("v_lshlrev_b32 v2, 4, v0")
    e("v_lshrrev_b32 v3, 3, v0"); e(f"v_mul_u32_u24 v3, {LROW}, v3")
    e("v_and_b32 v1, 7, v0"); e("v_lshl_add_u32 v3, v1, 3, v3")
    for k in range(4):
        e(f"s_add_u32 s{38+k}, s4, {4*k}")
        if k==3: e("s_min_u32 s41, s41, 13")
        e(f"s_lshl_b32 s{34+k}, s{38+k}, 10")
        e(f"s_lshl_b32 s{38+k}, s{38+k}, 6")
    e("s_mov_b32 s29, 0x07060302"); e("s_mov_b32 s42, 0")

def k4():
    kernel_begin("chain_kernel")
    e("s_cmp_ge_u32 s2, 44")
    e("s_cbranch_scc1 K4_done")
    srd(8, 14, WS_SIZE)
    wave_id(4)
    chain_common_setup()
    e("v_and_b32 v116, 15, v0"); e("v_lshrrev_b32 v117, 4, v0")
    e("s_waitcnt lgkmcnt(0)")
    e("s_cmp_ge_u32 s2, 16")
    e("s_cbranch_scc1 K4_B")
    def wreg(idx): return f"a[{4*idx}:{4*idx+3}]" if idx<64 else f"v[{120+4*(idx-64)}:{123+4*(idx-64)}]"
    e("s_mul_i32 s5, s2, 448"); e("s_mul_i32 s6, s4, 112"); e("s_add_u32 s5, s5, s6")
    e("v_add_u32 v20, s5, v116"); e("v_mul_u32_u24 v20, 896, v20")
    e("v_lshl_add_u32 v20, v117, 4, v20"); e(f"v_add_u32 v20, {WALL}, v20")
    for i in range(7):
        for j in range(14): e(f"buffer_load_dwordx4 {wreg(i*14+j)}, v20, s[8:11], 0 offen offset:{j*64}")
        e("v_add_u32 v20, 14336, v20")
    e(f"s_mov_b32 s30, {MEMS}")
    e("s_lshl_b32 s31, s4, 3"); e("s_mul_i32 s31, s31, 896")
    e(f"s_mul_i32 s32, s2, 640"); e(f"s_add_u32 s32, s32, {PS}")
    e("s_mov_b32 s33, 0")
    e("s_lshl_b32 s5, s4, 3"); e("s_add_u32 s5, s5, 8"); e(f"s_mul_i32 s5, s5, {LROW}")
    e("v_add_u32 v118, s5, v2")
    e("v_and_b32 v119, 7, v116"); e(f"v_mul_u32_u24 v119, {LROW}, v119"); e("v_lshl_add_u32 v119, v117, 4, v119")
    e(f"v_mul_u32_u24 v23, {LROW}, v116"); e("v_lshl_add_u32 v23, v117, 3, v23"); e("s_mul_i32 s5, s4, 224"); e("v_add_u32 v23, s5, v23")
    e("s_mul_i32 s5, s4, 1536"); e("s_add_u32 s5, s5, 45056")
    e("v_mul_u32_u24 v24, 192, v116"); e("v_lshl_add_u32 v24, v117, 4, v24"); e("v_add_u32 v24, s5, v24")
    e("v_lshrrev_b32 v26, 3, v0"); e("v_mul_u32_u24 v25, 192, v26"); e("v_lshl_add_u32 v25, v1, 5, v25"); e("v_add_u32 v25, 45056, v25")
    e("v_mul_u32_u24 v26, 80, v26"); e("v_lshl_add_u32 v26, v1, 4, v26")
    lab("K4A_loop")
    e("v_cmp_gt_u32 vcc, 56, v0"); e("s_and_saveexec_b64 s[20:21], vcc")
    e("s_mov_b32 s5, s31")
    for r in range(8):
        e(f"buffer_load_dwordx4 v[{32+4*r}:{35+4*r}], v2, s[8:11], s5 offen"); e("s_add_u32 s5, s5, 896")
    for r in range(8):
        e(f"s_waitcnt vmcnt({7-r})"); e(f"ds_write_b128 v118, v[{32+4*r}:{35+4*r}] offset:{r*LROW}")
    e("s_mov_b64 exec, s[20:21]")
    poll_mem("K4A", 30)
    e("s_waitcnt lgkmcnt(0)"); e("s_barrier")
    for j in range(14): e(f"ds_read_b128 v[{32+4*j}:{35+4*j}], v119 offset:{j*64}")
    for k in range(28): e(f"v_mov_b32 v{88+k}, 0")
    for j in range(14):
        e(f"s_waitcnt lgkmcnt({13-j})")
        for i in range(7): e(f"v_mfma_f32_16x16x32_bf16 v[{88+4*i}:{91+4*i}], {wreg(i*14+j)}, v[{32+4*j}:{35+4*j}], v[{88+4*i}:{91+4*i}]")
    for kt in range(3):
        for q in range(3):
            b=46+kt*14+q*4
            e(f"ds_read_b64 v[{b}:{b+1}], v23 offset:{kt*16*LROW+q*64}")
            e(f"ds_read_b64 v[{b+2}:{b+3}], v23 offset:{kt*16*LROW+q*64+32}")
        b=46+kt*14+12
        e(f"ds_read_b64 v[{b}:{b+1}], v23 offset:{kt*16*LROW+192}")
    e("s_nop 4")
    for i in range(7):
        e(f"v_cvt_pk_bf16_f32 v{32+2*i}, v{88+4*i}, v{89+4*i}"); e(f"v_cvt_pk_bf16_f32 v{33+2*i}, v{90+4*i}, v{91+4*i}")
    for k in range(12): e(f"v_mov_b32 v{4+k}, 0")
    e("s_waitcnt lgkmcnt(0)")
    for kt in range(3):
        for q in range(3):
            b=46+kt*14+q*4
            e(f"v_mfma_f32_16x16x32_bf16 v[{4+4*kt}:{7+4*kt}], v[{b}:{b+3}], v[{32+4*q}:{35+4*q}], v[{4+4*kt}:{7+4*kt}]")
        b=46+kt*14+12
        e(f"v_mfma_f32_16x16x16_bf16 v[{4+4*kt}:{7+4*kt}], v[{b}:{b+1}], v[44:45], v[{4+4*kt}:{7+4*kt}]")
    e("s_nop 7"); e("s_nop 1")
    e("v_cmp_gt_u32 vcc, 8, v116"); e("s_and_saveexec_b64 s[20:21], vcc")
    for kt in range(3): e(f"ds_write_b128 v24, v[{4+4*kt}:{7+4*kt}] offset:{kt*64}")
    e("s_mov_b64 exec, s[20:21]")
    e("s_waitcnt lgkmcnt(0)"); e("s_barrier")
    e("s_cmp_eq_u32 s4, 0"); e("s_cbranch_scc0 K4A_next")
    for w in range(4):
        e(f"ds_read_b128 v[{32+8*w}:{35+8*w}], v25 offset:{w*1536}"); e(f"ds_read_b128 v[{36+8*w}:{39+8*w}], v25 offset:{w*1536+16}")
    e("s_waitcnt lgkmcnt(0)")
    e("v_cmp_gt_u32 vcc, 5, v1")
    e("v_mov_b32 v21, 0xff800000")
    for k in range(8):
        e(f"v_add_f32 v{32+k}, v{32+k}, v{40+k}"); e(f"v_add_f32 v{48+k}, v{48+k}, v{56+k}"); e(f"v_add_f32 v{32+k}, v{32+k}, v{48+k}")
        e(f"v_cndmask_b32 v{32+k}, v21, v{32+k}, vcc")
    e("v_max_f32 v20, v32, v33")
    for k in range(2,8): e(f"v_max_f32 v20, v20, v{32+k}")
    swz_reduce("v_max_f32", 20, 22, (0x041F,0x081F,0x101F))
    e("v_mov_b32 v21, 0")
    for k in range(8):
        e(f"v_sub_f32 v{32+k}, v{32+k}, v20"); e(f"v_mul_f32 v{32+k}, 0x3db8aa3b, v{32+k}")
        e(f"v_exp_f32 v{32+k}, v{32+k}"); e("s_nop 0"); e(f"v_add_f32 v21, v21, v{32+k}")
    swz_reduce("v_add_f32", 21, 22, (0x041F,0x081F,0x101F))
    e("v_rcp_f32 v21, v21"); e("s_nop 0")
    for k in range(8): e(f"v_mul_f32 v{32+k}, v{32+k}, v21")
    for k in range(4):
        e(f"v_cvt_pk_bf16_f32 v{40+k}, v{32+2*k}, v{33+2*k}"); e(f"v_or_b32 v{40+k}, 0x80008000, v{40+k}")
    e("s_and_saveexec_b64 s[20:21], vcc")
    e("buffer_store_dwordx4 v[40:43], v26, s[8:11], s32 offen sc1")
    e("s_mov_b64 exec, s[20:21]")
    lab("K4A_next")
    e("s_add_u32 s30, s30, 14336"); e("s_add_u32 s31, s31, 28672"); e("s_add_u32 s32, s32, 10240")
    e("s_add_u32 s33, s33, 1"); e("s_cmp_lt_u32 s33, 64"); e("s_cbranch_scc1 K4A_loop")
    e("s_branch K4_done")
    lab("K4_B")
    e("s_sub_u32 s6, s2, 16")
    e("s_lshl_b32 s5, s4, 2"); e("s_mul_i32 s5, s5, 448"); e("s_lshl_b32 s7, s6, 4"); e("s_add_u32 s5, s5, s7"); e("s_add_u32 s5, s5, 7168")
    e("v_add_u32 v20, s5, v116"); e("v_mul_u32_u24 v20, 896, v20")
    e("v_lshl_add_u32 v20, v117, 4, v20"); e(f"v_add_u32 v20, {WALL}, v20")
    for i in range(4):
        for j in range(14): e(f"buffer_load_dwordx4 a[{4*(i*14+j)}:{4*(i*14+j)+3}], v20, s[8:11], 0 offen offset:{j*64}")
        e(f"v_add_u32 v20, {448*896}, v20")
    e(f"s_mov_b32 s30, {MEMS}")
    e("s_lshl_b32 s31, s6, 4"); e("s_lshl_b32 s5, s4, 2"); e("s_add_u32 s31, s31, s5"); e("s_lshl_b32 s7, s31, 8"); e("s_lshl_b32 s31, s31, 10")
    e(f"s_add_u32 s31, s31, {XBT}"); e(f"s_add_u32 s7, s7, {MEMB}")
    e("v_lshlrev_b32 v118, 6, v116"); e("v_lshl_add_u32 v118, v117, 4, v118")
    e("v_and_b32 v119, 7, v116"); e(f"v_mul_u32_u24 v23, 80, v119"); e(f"v_mul_u32_u24 v119, {LROW}, v119"); e("v_lshl_add_u32 v119, v117, 4, v119")
    e("v_lshl_add_u32 v24, v117, 4, v23"); e("v_add_u32 v24, 16, v24")
    e("v_mul_u32_u24 v25, 640, v117"); e("v_add_u32 v25, v25, v23")
    e("s_lshl_b32 s32, s4, 2"); e("s_mul_i32 s32, s32, 640"); e(f"s_add_u32 s32, s32, {PS}")
    e("s_lshl_b32 s5, s4, 10"); e("s_add_u32 s5, s5, 8192")
    e("v_lshlrev_b32 v28, 4, v116"); e("v_lshl_add_u32 v28, v117, 3, v28"); e("v_add_u32 v26, s5, v28")
    e("v_lshlrev_b32 v27, 4, v116"); e("v_lshl_add_u32 v27, v117, 8, v27"); e("v_add_u32 v27, s5, v27")
    e("s_lshl_b32 s5, s4, 9"); e("s_add_u32 s5, s5, 16384")
    e("v_lshlrev_b32 v29, 2, v116"); e("v_lshl_add_u32 v29, v117, 8, v29"); e("v_add_u32 v29, s5, v29")
    e("v_lshrrev_b32 v31, 2, v0"); e("v_and_b32 v21, 3, v0"); e("v_lshlrev_b32 v21, 4, v21")
    e("v_lshl_add_u32 v30, v31, 6, v21"); e("v_add_u32 v30, 16384, v30")
    e("v_lshl_add_u32 v31, v31, 7, v21")
    e("s_lshr_b32 s16, s6, 1"); e("s_lshl_b32 s16, s16, 10"); e("s_and_b32 s17, s6, 1"); e("s_lshl_b32 s17, s17, 6"); e("s_add_u32 s16, s16, s17")
    e(f"s_add_u32 s16, s16, {MEMS+14336}")
    e("s_mov_b32 s33, 0")
    lab("K4B_loop")
    for i in range(4): e(f"buffer_load_dwordx4 v[{96+4*i}:{99+4*i}], v118, s[8:11], s31 offen offset:{i*1024}")
    poll_mem("K4B", 30)
    e("s_waitcnt lgkmcnt(0)"); e("s_barrier")
    for j in range(14): e(f"ds_read_b128 v[{32+4*j}:{35+4*j}], v119 offset:{j*64}")
    for k in range(16): e(f"v_mov_b32 v{120+k}, 0")
    for j in range(14):
        e(f"s_waitcnt lgkmcnt({13-j})")
        for i in range(4): e(f"v_mfma_f32_16x16x32_bf16 v[{120+4*i}:{123+4*i}], v[{32+4*j}:{35+4*j}], a[{4*(i*14+j)}:{4*(i*14+j)+3}], v[{120+4*i}:{123+4*i}]")
    e("s_nop 7"); e("s_nop 1")
    e("v_cmp_gt_u32 vcc, 2, v117"); e("s_and_saveexec_b64 s[20:21], vcc")
    for i in range(4):
        e(f"v_cvt_pk_bf16_f32 v{136+2*i}, v{120+4*i}, v{121+4*i}"); e(f"v_cvt_pk_bf16_f32 v{137+2*i}, v{122+4*i}, v{123+4*i}")
        e(f"ds_write_b64 v26, v[{136+2*i}:{137+2*i}] offset:{i*256}")
        e(f"buffer_store_dwordx2 v[{136+2*i}:{137+2*i}], v28, s[8:11], s7 offen offset:{i*256}")
    e("s_mov_b64 exec, s[20:21]")
    e("s_waitcnt lgkmcnt(0)")
    e("ds_read_b128 v[112:115], v27")
    lab("K4B_pp")
    for i in range(4): e(f"buffer_load_dwordx4 v[{32+4*i}:{35+4*i}], v24, s[8:11], s32 offen offset:{i*640} sc1")
    e("buffer_load_dwordx4 v[48:51], v25, s[8:11], s32 offen sc1")
    e("s_waitcnt vmcnt(0)")
    e("v_and_b32 v20, v32, v33")
    for k in range(2,20): e(f"v_and_b32 v20, v20, v{32+k}")
    e("v_and_b32 v20, 0x80008000, v20")
    e("v_cmp_ne_u32 vcc, 0x80008000, v20")
    e("s_add_u32 s42, s42, 1"); e("s_cmp_gt_u32 s42, 0x400000"); e("s_cbranch_scc1 K4B_ppo")
    e("s_cbranch_vccnz K4B_pp")
    lab("K4B_ppo")
    for k in range(20): e(f"v_and_b32 v{32+k}, 0x7fff7fff, v{32+k}")
    for k in range(4): e(f"v_mov_b32 v{120+k}, 0")
    e("s_waitcnt lgkmcnt(0)"); e("s_nop 0")
    for i in range(4): e(f"v_mfma_f32_16x16x32_bf16 v[120:123], v[{32+4*i}:{35+4*i}], v[{96+4*i}:{99+4*i}], v[120:123]")
    e("v_mfma_f32_16x16x32_bf16 v[120:123], v[48:51], v[112:115], v[120:123]")
    e("s_nop 7"); e("s_nop 1")
    e("v_cmp_gt_u32 vcc, 2, v117"); e("s_and_saveexec_b64 s[20:21], vcc")
    for r in range(4): e(f"ds_write_b32 v29, v{120+r} offset:{r*64}")
    e("s_mov_b64 exec, s[20:21]")
    e("s_waitcnt lgkmcnt(0)"); e("s_barrier")
    e("s_cmp_eq_u32 s4, 0"); e("s_cbranch_scc0 K4B_next")
    e("v_cmp_gt_u32 vcc, 32, v0"); e("s_and_saveexec_b64 s[20:21], vcc")
    for w in range(4): e(f"ds_read_b128 v[{32+4*w}:{35+4*w}], v30 offset:{w*512}")
    e("s_waitcnt lgkmcnt(0)")
    for k in range(4):
        e(f"v_add_f32 v{32+k}, v{32+k}, v{36+k}"); e(f"v_add_f32 v{40+k}, v{40+k}, v{44+k}"); e(f"v_add_f32 v{32+k}, v{32+k}, v{40+k}")
        rnd(32+k); e(f"v_or_b32 v{32+k}, {TAG}, v{32+k}")
    e("buffer_store_dwordx4 v[32:35], v31, s[8:11], s16 offen sc1")
    e("s_mov_b64 exec, s[20:21]")
    lab("K4B_next")
    e("s_add_u32 s30, s30, 14336"); e("s_add_u32 s16, s16, 14336"); e(f"s_add_u32 s31, s31, {28*16384}")
    e(f"s_add_u32 s7, s7, {28*4096}"); e("s_add_u32 s32, s32, 10240")
    e("s_add_u32 s33, s33, 1"); e("s_cmp_lt_u32 s33, 64"); e("s_cbranch_scc1 K4B_loop")
    lab("K4_done")
    kernel_end("chain_kernel", 512, 256)

PL=45056
def k5():
    kernel_begin("final_kernel")
    e("s_cmp_ge_u32 s2, 64")
    e("s_cbranch_scc1 K5_done")
    srd(8, 14, WS_SIZE); srd(12, 0, 1835008); srd(16, 11, 896); srd(24, 12, 1835008)
    wave_id(4)
    chain_common_setup()
    e("v_and_b32 v116, 15, v0"); e("v_lshrrev_b32 v117, 4, v0")
    e("s_waitcnt lgkmcnt(0)")
    e("s_mul_i32 s30, s2, 14336"); e(f"s_add_u32 s30, s30, {MEMS}")
    poll_mem("K5", 30)
    e("s_lshl_b32 s5, s4, 3"); e("s_lshl_b32 s6, s2, 5"); e("s_add_u32 s6, s6, s5"); e("s_mul_i32 s6, s6, 896")
    e("s_add_u32 s5, s5, 8"); e(f"s_mul_i32 s5, s5, {LROW}"); e("v_add_u32 v118, s5, v2")
    e("v_cmp_gt_u32 vcc, 56, v0"); e("s_and_saveexec_b64 s[20:21], vcc")
    for r in range(8):
        e(f"buffer_load_dwordx4 v[{32+4*r}:{35+4*r}], v2, s[8:11], s6 offen"); e("s_add_u32 s6, s6, 896")
    for r in range(8):
        e(f"s_waitcnt vmcnt({7-r})"); e(f"ds_write_b128 v118, v[{32+4*r}:{35+4*r}] offset:{r*LROW}")
    e("s_mov_b64 exec, s[20:21]")
    e("s_waitcnt lgkmcnt(0)"); e("s_barrier")
    e(f"v_mul_u32_u24 v119, {LROW}, v116"); e("v_lshl_add_u32 v119, v117, 4, v119")
    for kt in range(3):
        for j in range(14):
            a=(kt*14+j)*4
            e(f"ds_read_b128 a[{a}:{a+3}], v119 offset:{kt*16*LROW+j*64}")
        e("s_waitcnt lgkmcnt(0)")
    e("s_lshl_b32 s6, s2, 5"); e("v_add_u32 v23, s6, v116"); e("v_mul_u32_u24 v23, 14336, v23")
    e("v_lshl_add_u32 v23, v117, 4, v23"); e("s_mul_i32 s6, s4, 3584"); e(f"s_add_u32 s6, s6, {XA}"); e("v_add_u32 v23, s6, v23")
    e(f"v_add_u32 v24, {16*14336}, v23")
    for kt in range(3):
        for r in range(4): e(f"v_lshl_add_u32 v{120+4*kt+r}, v117, 2, {16*kt+r}")
    e("v_add_u32 v132, 8, v116"); e("v_add_u32 v133, 24, v116")
    e("v_xor_b32 v134, 16, v0"); e("v_lshlrev_b32 v134, 2, v134"); e("v_xor_b32 v135, 32, v0"); e("v_lshlrev_b32 v135, 2, v135")
    e("v_mov_b32 v136, 0xff800000")
    e("s_mul_i32 s6, s4, 12288"); e(f"s_add_u32 s6, s6, {PL}")
    e("v_mul_u32_u24 v25, 96, v116"); e("v_lshl_add_u32 v25, v117, 3, v25"); e("v_add_u32 v25, s6, v25")
    for hh in range(4):
        for qt in range(2):
            for j in range(14): e(f"buffer_load_dwordx4 v[{140+(qt*14+j)*4}:{143+(qt*14+j)*4}], v{23+qt}, s[8:11], 0 offen offset:{hh*896+j*64}")
        for qt in range(2):
            for k in range(12): e(f"v_mov_b32 v{32+k}, 0")
            e(f"s_waitcnt vmcnt({14-14*qt})")
            for j in range(14):
                for kt in range(3):
                    a=(kt*14+j)*4; b=140+(qt*14+j)*4
                    e(f"v_mfma_f32_16x16x32_bf16 v[{32+4*kt}:{35+4*kt}], a[{a}:{a+3}], v[{b}:{b+3}], v[{32+4*kt}:{35+4*kt}]")
            e("s_nop 7"); e("s_nop 1")
            for k in range(12):
                e(f"v_cmp_le_u32 vcc, v{120+k}, v{132+qt}"); e("s_nop 1")
                e(f"v_cndmask_b32 v{32+k}, v136, v{32+k}, vcc")
            e("v_max_f32 v20, v32, v33")
            for k in range(2,12): e(f"v_max_f32 v20, v20, v{32+k}")
            for a in (134,135):
                e(f"ds_bpermute_b32 v21, v{a}, v20"); e("s_waitcnt lgkmcnt(0)"); e("v_max_f32 v20, v20, v21")
            e("v_mov_b32 v21, 0")
            for k in range(12):
                e(f"v_sub_f32 v{32+k}, v{32+k}, v20"); e(f"v_mul_f32 v{32+k}, 0x3db8aa3b, v{32+k}")
                e(f"v_exp_f32 v{32+k}, v{32+k}"); e("s_nop 0"); e(f"v_add_f32 v21, v21, v{32+k}")
            for a in (134,135):
                e(f"ds_bpermute_b32 v22, v{a}, v21"); e("s_waitcnt lgkmcnt(0)"); e("v_add_f32 v21, v21, v22")
            e("v_rcp_f32 v21, v21"); e("s_nop 0")
            for k in range(12): e(f"v_mul_f32 v{32+k}, v{32+k}, v21")
            for kt in range(3):
                e(f"v_cvt_pk_bf16_f32 v{44+2*kt}, v{32+4*kt}, v{33+4*kt}"); e(f"v_cvt_pk_bf16_f32 v{45+2*kt}, v{34+4*kt}, v{35+4*kt}")
                if kt==2:
                    e("v_cmp_gt_u32 vcc, 2, v117"); e("s_and_saveexec_b64 s[20:21], vcc")
                e(f"ds_write_b64 v25, v[{44+2*kt}:{45+2*kt}] offset:{hh*3072+qt*1536+kt*32}")
            e("s_mov_b64 exec, s[20:21]")
    e("s_waitcnt lgkmcnt(0)"); e("s_barrier")
    for k in range(112): e(f"v_accvgpr_write_b32 a{k}, 0")
    e("s_mul_i32 s31, s2, 28"); e("s_mul_i32 s6, s4, 7"); e("s_add_u32 s31, s31, s6"); e("s_lshl_b32 s32, s31, 12"); e("s_lshl_b32 s31, s31, 14")
    e(f"s_add_u32 s31, s31, {XBT}"); e(f"s_add_u32 s32, s32, {MEMB}")
    e("v_lshlrev_b32 v26, 6, v116"); e("v_lshl_add_u32 v26, v117, 4, v26")
    e("v_lshlrev_b32 v27, 4, v116"); e("v_lshl_add_u32 v27, v117, 8, v27")
    e("s_mul_i32 s6, s4, 112"); e("v_add_u32 v28, s6, v116"); e("v_mul_u32_u24 v28, 3584, v28"); e("v_lshl_add_u32 v28, v117, 4, v28"); e(f"v_add_u32 v28, {W2T}, v28")
    e("s_lshl_b32 s6, s2, 5"); e("v_add_u32 v29, s6, v116"); e("v_mul_u32_u24 v29, 3584, v29"); e("v_lshl_add_u32 v29, v117, 4, v29"); e(f"v_add_u32 v29, {G}, v29")
    e("v_mul_u32_u24 v30, 96, v116"); e(f"v_add_u32 v31, {PL}, v30"); e("v_lshl_add_u32 v30, v117, 4, v30"); e(f"v_add_u32 v30, {PL+16}, v30")
    e("v_mul_u32_u24 v20, 3072, v117"); e("v_add_u32 v31, v31, v20")
    steps=[('x',h) for h in range(16)]+[('m',j) for j in range(4)]+[('f',j) for j in range(56)]
    def ld(stp, st):
        kind,j=stp
        wb=32+st*36
        for ct in range(7):
            d=f"v[{wb+4*ct}:{wb+4*ct+3}]"
            if kind=='x':
                e(f"s_add_u32 s6, s31, {ct*16384+j*1024}"); e(f"buffer_load_dwordx4 {d}, v26, s[8:11], s6 offen")
            elif kind=='m':
                e(f"s_add_u32 s6, s32, {ct*4096+j*1024}"); e(f"buffer_load_dwordx4 {d}, v27, s[8:11], s6 offen")
            else:
                e(f"s_mov_b32 s6, {ct*16*3584+j*64}"); e(f"buffer_load_dwordx4 {d}, v28, s[8:11], s6 offen")
        for qt in range(2):
            d=f"v[{wb+28+4*qt}:{wb+31+4*qt}]"
            if kind=='x': e(f"ds_read_b128 {d}, v30 offset:{j*3072+qt*1536}")
            elif kind=='m': e(f"ds_read_b128 {d}, v31 offset:{j*12288+qt*1536}")
            else:
                e(f"s_mov_b32 s6, {qt*16*3584+j*64}"); e(f"buffer_load_dwordx4 {d}, v29, s[8:11], s6 offen")
    cnt=lambda k: 9 if k=='f' else 7
    ld(steps[0],0)
    for n,stp in enumerate(steps):
        st=n&1; wb=32+st*36
        if n+1<len(steps):
            ld(steps[n+1], st^1); e(f"s_waitcnt vmcnt({cnt(steps[n+1][0])}) lgkmcnt({0 if steps[n+1][0]=='f' else 2})")
        else: e("s_waitcnt vmcnt(0) lgkmcnt(0)")
        for ct in range(7):
            for qt in range(2):
                a=(ct*2+qt)*4+(56 if stp[0]=='f' else 0)
                e(f"v_mfma_f32_16x16x32_bf16 a[{a}:{a+3}], v[{wb+4*ct}:{wb+4*ct+3}], v[{wb+28+4*qt}:{wb+31+4*qt}], a[{a}:{a+3}]")
    e("s_nop 7"); e("s_nop 7")
    e("s_mul_i32 s6, s4, 224"); e("v_lshlrev_b32 v24, 3, v117"); e("v_add_u32 v24, s6, v24")
    e("s_lshl_b32 s6, s2, 5"); e("v_add_u32 v23, s6, v116"); e("v_mul_u32_u24 v23, 896, v23"); e("v_add_u32 v23, v23, v24")
    for ct in range(7):
        e(f"buffer_load_dwordx2 v[32:33], v24, s[16:19], 0 offen offset:{ct*32}")
        for qt in range(2):
            e(f"s_mov_b32 s6, {qt*16*896+ct*32}")
            e(f"buffer_load_dwordx2 v[34:35], v23, s[12:15], s6 offen")
            e("s_waitcnt vmcnt(0)")
            a=(ct*2+qt)*4
            for r in range(4):
                src=32+r//2; xs=34+r//2
                op=(lambda d,s: f"v_lshlrev_b32 v{d}, 16, v{s}") if r%2==0 else (lambda d,s: f"v_and_b32 v{d}, 0xffff0000, v{s}")
                e(op(40,src)); e(op(41,xs))
                e(f"v_accvgpr_read_b32 v42, a{a+r}"); e(f"v_accvgpr_read_b32 v43, a{a+56+r}")
                rnd(42); rnd(43)
                e("v_add_f32 v43, v43, v40"); rnd(43)
                e("v_add_f32 v42, v42, v41"); rnd(42)
                e(f"v_add_f32 v{44+r}, v42, v43")
            e("v_cvt_pk_bf16_f32 v48, v44, v45"); e("v_cvt_pk_bf16_f32 v49, v46, v47")
            e("buffer_store_dwordx2 v[48:49], v23, s[24:27], s6 offen")
            e("s_nop 1")
    lab("K5_done")
    kernel_end("final_kernel", 512, 256)

k1(); k2(); k3(); k4(); k5()
launch=f"""; @launch kernel=prep_kernel grid=({K1_WGS},1,1) block=(256,1,1) lds=0
; @launch kernel=wprod_kernel grid=(128,1,1) block=(256,1,1) lds=0
; @launch kernel=gemm_kernel grid=(256,1,1) block=(256,1,1) lds={128*LROW}
; @launch kernel=chain_kernel grid=(44,1,1) block=(256,1,1) lds=53248
; @launch kernel=final_kernel grid=(64,1,1) block=(256,1,1) lds=94208
"""
txt=HDR+launch+'.amdgcn_target "amdgcn-amd-amdhsa--gfx950"\n.text\n'+"\n".join(out)+'\n.section .rodata,"a"\n'+"\n".join(kds)+"\n"
open('cdna_kernels/%s.s'%NAME,'w').write(txt)
```

```python
import sys
NAME = "parallel_sum__memory_aug_recurrent_mem_tr__dense_activation_gelu__prompt"
HDR = open('cdna_kernels/%s.s.ref' % NAME).read().split('; Override launch')[0]

XN=0; WALL=0x200000; WOT=0x1000000; W2T=0x1400000; XA=0x1600000; XBT=0x3200000
G=0x4E00000; MEMS=0x5500000; PS=0x5600000; MEMB=0x5700000
WS_SIZE=0x10000000
TAG=0x5A5A
LROW=912

out=[]
def e(s): out.append("    "+s)
def lab(s): out.append(s+":")

def magic(d): return (2**32 + d - 1)//d

def srd(dst, slot, size, tmp=None):
    e(f"s_load_dwordx2 s[{dst}:{dst+1}], s[0:1], {slot*8}")
    e(f"s_mov_b32 s{dst+2}, {size}")
    e(f"s_mov_b32 s{dst+3}, 0x00020000")

def kernel_begin(name):
    out.append(f".globl {name}")
    out.append(".p2align 8")
    out.append(f".type {name},@function")
    lab(name)

kds=[]
def kernel_end(name, vgpr, accum, sgpr=102):
    e("s_endpgm")
    kds.append(f""".p2align 6
.amdhsa_kernel {name}
  .amdhsa_next_free_vgpr {vgpr}
  .amdhsa_next_free_sgpr {sgpr}
  .amdhsa_accum_offset {accum}
  .amdhsa_group_segment_fixed_size 0
  .amdhsa_kernarg_size 120
  .amdhsa_user_sgpr_count 2
  .amdhsa_user_sgpr_kernarg_segment_ptr 1
  .amdhsa_system_sgpr_workgroup_id_x 1
.end_amdhsa_kernel""")

def wave_id(sdst, vt=1):
    e(f"v_lshrrev_b32 v{vt}, 6, v0")
    e("s_nop 0")
    e(f"v_readfirstlane_b32 s{sdst}, v{vt}")
    e("v_and_b32 v0, 63, v0")
    e("s_nop 2")

def swz_reduce(op, v, t, masks=(0x041F,0x081F,0x101F,0x201F,0x401F)):
    for m in masks:
        e(f"ds_swizzle_b32 v{t}, v{v} offset:{hex(m)}")
        e("s_waitcnt lgkmcnt(0)")
        e(f"{op} v{v}, v{v}, v{t}")

def full_reduce_add(v, t, s0):
    swz_reduce("v_add_f32", v, t)
    e("s_nop 1")
    e(f"v_readlane_b32 s{s0}, v{v}, 0")
    e(f"v_readlane_b32 s{s0+1}, v{v}, 32")
    e("s_nop 1")
    e(f"v_mov_b32 v{v}, s{s0}")
    e(f"v_add_f32 v{v}, s{s0+1}, v{v}")

def rnd(v):
    e(f"v_cvt_pk_bf16_f32 v{v}, v{v}, v{v}")
    e(f"v_lshlrev_b32 v{v}, 16, v{v}")

N_LN=2048; N_WO=3584; N_W1=1568; N_W2=1568
ZSTART=MEMS+14336; CNT=PS+655360; ZEND=CNT+4096; N_Z=(ZEND-ZSTART)//1024; N_S0=14
K1_WAVES=N_LN+N_WO+N_W1+N_W2+N_Z+N_S0
assert K1_WAVES%4==0
K1_WGS=K1_WAVES//4

def k1():
    kernel_begin("prep_kernel")
    e(f"s_cmp_ge_u32 s2, {K1_WGS}")
    e("s_cbranch_scc1 K1_done")
    srd(8, 14, WS_SIZE)
    wave_id(4)
    e("s_lshl_b32 s5, s2, 2")
    e("s_add_u32 s5, s5, s4")
    e(f"s_cmp_ge_u32 s5, {N_LN}")
    e("s_cbranch_scc1 K1_notln")
    srd(12, 0, 1835008)
    e("s_mul_i32 s6, s5, 896")
    e("v_lshlrev_b32 v1, 4, v0")
    for i in range(4): e(f"v_mov_b32 v{4+i}, 0")
    e("v_mov_b32 v20, 0")
    e("v_mov_b32 v21, 0")
    e("s_waitcnt lgkmcnt(0)")
    e("v_cmp_gt_u32 vcc, 56, v0")
    e("s_and_saveexec_b64 s[20:21], vcc")
    e("buffer_load_dwordx4 v[4:7], v1, s[12:15], s6 offen")
    e("s_waitcnt vmcnt(0)")
    for i in range(4):
        e(f"v_lshlrev_b32 v{8+2*i}, 16, v{4+i}")
        e(f"v_and_b32 v{9+2*i}, 0xffff0000, v{4+i}")
    for i in range(8): e(f"v_add_f32 v20, v20, v{8+i}")
    e("s_mov_b64 exec, s[20:21]")
    full_reduce_add(20, 22, 24)
    e("v_mul_f32 v20, 0x3b124925, v20")
    e("s_and_saveexec_b64 s[20:21], vcc")
    for i in range(8):
        e(f"v_sub_f32 v22, v{8+i}, v20")
        e(f"v_fmac_f32 v21, v22, v22")
    e("s_mov_b64 exec, s[20:21]")
    full_reduce_add(21, 22, 24)
    e("v_mul_f32 v21, 0x3b124925, v21")
    rnd(20); rnd(21)
    e("v_add_f32 v21, 0x3727c5ac, v21")
    rnd(21)
    e("v_sqrt_f32 v21, v21")
    e("s_nop 0")
    rnd(21)
    e("v_rcp_f32 v21, v21")
    e("s_nop 0")
    for i in range(8):
        e(f"v_sub_f32 v{8+i}, v{8+i}, v20")
        rnd(8+i)
        e(f"v_mul_f32 v{8+i}, v{8+i}, v21")
    for i in range(4): e(f"v_cvt_pk_bf16_f32 v{4+i}, v{8+2*i}, v{9+2*i}")
    e("s_and_saveexec_b64 s[20:21], vcc")
    e("buffer_store_dwordx4 v[4:7], v1, s[8:11], s6 offen")
    e("s_branch K1_done")
    lab("K1_notln")
    e(f"s_sub_u32 s5, s5, {N_LN}")
    def tr_setup(slot, size, C, ncb, rblk_shift, dst, nxt, cnt):
        e(f"s_cmp_ge_u32 s5, {cnt}")
        e(f"s_cbranch_scc1 {nxt}")
        srd(12, slot, size)
        e(f"s_mov_b32 s16, {C*2}")
        e(f"s_mov_b32 s17, {magic(ncb)}")
        e(f"s_mov_b32 s18, {ncb}")
        e(f"s_mov_b32 s19, {rblk_shift}")
        e(f"s_mov_b32 s22, {dst}")
        e("s_branch K1_tr")
        lab(nxt)
        e(f"s_sub_u32 s5, s5, {cnt}")
    tr_setup(5, 3670016, 448, 7, 8, WOT, "K1_t1", N_WO)
    tr_setup(8, 1605632, 1792, 28, 31, WALL+14336*896, "K1_t2", N_W1)
    tr_setup(10, 1605632, 448, 7, 30, W2T, "K1_t3", N_W2)
    e(f"s_cmp_ge_u32 s5, {N_Z}")
    e("s_cbranch_scc1 K1_s0")
    e("s_lshl_b32 s6, s5, 10")
    e(f"s_add_u32 s6, s6, {ZSTART}")
    e("v_lshlrev_b32 v1, 4, v0")
    for i in range(4): e(f"v_mov_b32 v{4+i}, 0")
    e("s_waitcnt lgkmcnt(0)")
    e("buffer_store_dwordx4 v[4:7], v1, s[8:11], s6 offen")
    e("s_branch K1_done")
    lab("K1_s0")
    e(f"s_sub_u32 s5, s5, {N_Z}")
    srd(12, 1, 7168)
    e("v_lshrrev_b32 v1, 3, v0")
    e("v_mul_u32_u24 v1, 896, v1")
    e("v_and_b32 v2, 7, v0")
    e("v_lshlrev_b32 v2, 3, v2")
    e("v_add_u32 v1, v1, v2")
    e("s_lshl_b32 s6, s5, 6")
    e("s_waitcnt lgkmcnt(0)")
    e("buffer_load_dwordx2 v[4:5], v1, s[12:15], s6 offen")
    e("s_waitcnt vmcnt(0)")
    e("v_lshlrev_b32 v8, 16, v4"); e("v_and_b32 v9, 0xffff0000, v4")
    e("v_lshlrev_b32 v10, 16, v5"); e("v_and_b32 v11, 0xffff0000, v5")
    for i in range(4): e(f"v_or_b32 v{8+i}, {TAG}, v{8+i}")
    e("v_lshlrev_b32 v1, 4, v0")
    e("s_lshl_b32 s6, s5, 10")
    e(f"s_add_u32 s6, s6, {MEMS}")
    e("buffer_store_dwordx4 v[8:11], v1, s[8:11], s6 offen")
    e("s_branch K1_done")
    lab("K1_tr")
    e("s_mul_hi_u32 s23, s5, s17")
    e("s_mul_i32 s24, s23, s18")
    e("s_sub_u32 s24, s5, s24")
    e("s_lshl_b32 s23, s23, 3")
    e("s_lshl_b32 s24, s24, 6")
    e("v_add_u32 v1, s24, v0")
    e("v_lshlrev_b32 v2, 1, v1")
    e("s_mul_i32 s25, s23, s16")
    e("s_waitcnt lgkmcnt(0)")
    for i in range(8):
        e(f"buffer_load_ushort v{4+i}, v2, s[12:15], s25 offen")
        e("s_add_u32 s25, s25, s16")
    e("s_cmp_eq_u32 s19, 8")
    e("s_cbranch_scc0 K1_tr_b")
    e("s_lshr_b32 s26, s23, 8")
    e("s_mul_i32 s26, s26, 229376")
    e("s_and_b32 s27, s23, 255")
    e("s_lshl_b32 s27, s27, 1")
    e("s_add_u32 s26, s26, s27")
    e("s_mov_b32 s27, 512")
    e("s_branch K1_tr_c")
    lab("K1_tr_b")
    e("s_lshl_b32 s26, s23, 1")
    e("s_mov_b32 s27, 896")
    e("s_cmp_eq_u32 s19, 31")
    e("s_cbranch_scc1 K1_tr_c")
    e("s_mov_b32 s27, 3584")
    lab("K1_tr_c")
    e("s_add_u32 s26, s26, s22")
    e("v_mul_lo_u32 v3, v1, s27")
    e("s_waitcnt vmcnt(0)")
    for i in range(4): e(f"v_lshl_or_b32 v{12+i}, v{5+2*i}, 16, v{4+2*i}")
    e("buffer_store_dwordx4 v[12:15], v3, s[8:11], s26 offen")
    lab("K1_done")
    kernel_end("prep_kernel", 32, 32)

def k2():
    kernel_begin("wprod_kernel")
    e("s_cmp_ge_u32 s2, 128")
    e("s_cbranch_scc1 K2_done")
    srd(8, 14, WS_SIZE)
    wave_id(4)
    e("s_lshr_b32 s5, s2, 6")
    e("s_lshr_b32 s6, s2, 2"); e("s_and_b32 s6, s6, 15")
    e("s_and_b32 s7, s2, 3")
    e("s_cmp_eq_u32 s5, 0")
    e("s_cbranch_scc0 K2_b")
    srd(12, 2, 3670016); srd(16, 3, 3670016)
    e("s_mov_b32 s20, 8192"); e("s_lshl_b32 s21, s6, 9")
    e("s_branch K2_c")
    lab("K2_b")
    srd(12, 4, 3670016); srd(16, 14, WS_SIZE)
    e("s_mov_b32 s20, 512"); e("s_mul_i32 s21, s6, 229376"); e(f"s_add_u32 s21, s21, {WOT}")
    lab("K2_c")
    e("v_and_b32 v1, 15, v0"); e("v_lshrrev_b32 v2, 4, v0")
    e("s_mul_i32 s22, s7, 112")
    e("v_add_u32 v3, s22, v1")
    e("v_lshlrev_b32 v3, 13, v3")
    e("s_lshl_b32 s23, s6, 9")
    e("v_lshl_add_u32 v3, v2, 4, v3")
    e("v_add_u32 v3, s23, v3")
    e("s_mul_i32 s23, s4, 112")
    e("v_add_u32 v4, s23, v1")
    e("v_mul_lo_u32 v5, v4, s20")
    e("v_lshl_add_u32 v5, v2, 4, v5")
    e("v_add_u32 v5, s21, v5")
    e("s_lshl_b32 s24, s20, 4")
    for i in range(7):
        e(f"v_add_u32 v{6+i}, {i*131072}, v3")
        if i==0: e("v_mov_b32 v130, v5")
        else: e(f"v_add_u32 v{130+i}, s24, v{129+i}")
    for k in range(196): e(f"v_accvgpr_write_b32 a{k}, 0")
    e("s_waitcnt lgkmcnt(0)")
    def ld(j, st):
        for i in range(7): e(f"buffer_load_dwordx4 v[{16+st*28+4*i}:{19+st*28+4*i}], v{6+i}, s[12:15], 0 offen offset:{j*64}")
        for i in range(7): e(f"buffer_load_dwordx4 v[{72+st*28+4*i}:{75+st*28+4*i}], v{130+i}, s[16:19], 0 offen offset:{j*64}")
    ld(0,0)
    for j in range(8):
        st=j&1
        if j<7:
            ld(j+1, st^1); e("s_waitcnt vmcnt(14)")
        else: e("s_waitcnt vmcnt(0)")
        for i in range(7):
            for n in range(7):
                a=(i*7+n)*4
                e(f"v_mfma_f32_16x16x32_bf16 a[{a}:{a+3}], v[{16+st*28+4*i}:{19+st*28+4*i}], v[{72+st*28+4*n}:{75+st*28+4*n}], a[{a}:{a+3}]")
    e("s_nop 7"); e("s_nop 7")
    e("s_mul_i32 s25, s5, 7168"); e("s_mul_i32 s26, s6, 448"); e("s_add_u32 s25, s25, s26")
    e("v_add_u32 v4, s25, v4")
    e("v_mul_u32_u24 v4, 896, v4")
    e("v_lshl_add_u32 v4, v2, 3, v4")
    e("s_lshl_b32 s22, s22, 1"); e(f"s_add_u32 s22, s22, {WALL}")
    e("v_add_u32 v4, s22, v4")
    for n in range(7):
        for i in range(7):
            a=(i*7+n)*4
            for r in range(4): e(f"v_accvgpr_read_b32 v{140+r}, a{a+r}")
            e("v_cvt_pk_bf16_f32 v144, v140, v141"); e("v_cvt_pk_bf16_f32 v145, v142, v143")
            e(f"buffer_store_dwordx2 v[144:145], v4, s[8:11], 0 offen offset:{i*32}")
            e("s_nop 1")
        e("v_add_u32 v4, 14336, v4")
    lab("K2_done")
    kernel_end("wprod_kernel", 160+196, 160)

def k3():
    lab("K3_entry")
    e("s_sub_u32 s2, s2, 44")
    e("s_cmp_ge_u32 s2, 189")
    e("s_cbranch_scc1 K3_done")
    srd(12, 9, 3584)
    e(f"s_mov_b32 s5, {magic(63)}"); e("s_mul_hi_u32 s5, s2, s5"); e("s_mul_i32 s6, s5, 63"); e("s_sub_u32 s6, s2, s6")
    lab("K3_mt")
    e("s_lshl_b32 s7, s5, 7"); e("s_lshl_b32 s16, s4, 5"); e("s_add_u32 s7, s7, s16")
    e("s_mul_i32 s7, s7, 896")
    e("v_lshlrev_b32 v1, 4, v0")
    e("s_mul_i32 s16, s16, %d"%LROW)
    e("v_add_u32 v2, s16, v1")
    e("s_waitcnt lgkmcnt(0)")
    e("v_cmp_gt_u32 vcc, 56, v0")
    e("s_and_saveexec_b64 s[20:21], vcc")
    for r in range(32):
        e(f"buffer_load_dwordx4 v[{8+4*r}:{11+4*r}], v1, s[8:11], s7 offen")
        e("s_add_u32 s7, s7, 896")
    for r in range(32):
        e(f"s_waitcnt vmcnt({31-r})")
        e(f"ds_write_b128 v2, v[{8+4*r}:{11+4*r}] offset:{r*LROW}")
    e("s_mov_b64 exec, s[20:21]")
    e("s_waitcnt lgkmcnt(0)")
    e("s_barrier")
    e("v_and_b32 v1, 15, v0"); e("v_lshrrev_b32 v2, 4, v0")
    e(f"v_mul_u32_u24 v3, {LROW}, v1"); e("v_lshl_add_u32 v3, v2, 4, v3")
    e(f"v_add_u32 v137, {64*LROW}, v3"); e("s_mov_b32 s7, s6")
    lab("K3_pass")
    e("s_lshl_b32 s16, s7, 8"); e("s_lshl_b32 s17, s4, 6"); e("s_add_u32 s16, s16, s17")
    e("v_add_u32 v4, s16, v1")
    e("v_mul_u32_u24 v4, 896, v4")
    e("v_lshl_add_u32 v4, v2, 4, v4")
    e(f"v_add_u32 v4, {WALL}, v4")
    for t in range(1,4): e(f"v_add_u32 v{4+t}, {t*14336}, v4")
    for k in range(128): e(f"v_accvgpr_write_b32 a{k}, 0")
    e("s_cmp_ge_u32 s7, 28"); e("s_cbranch_scc0 K3_sw")
    e("s_cmp_ge_u32 s7, 56"); e("s_cbranch_scc0 K3_ns")
    lab("K3_sw")
    def body(sw):
        def ld(j, st):
            for t in range(4): e(f"buffer_load_dwordx4 v[{8+st*16+4*t}:{11+st*16+4*t}], v{4+t}, s[8:11], 0 offen offset:{j*64}")
            for i in range(8): e(f"ds_read_b128 v[{40+st*32+4*i}:{43+st*32+4*i}], v{3 if i<4 else 137} offset:{(i&3)*16*LROW+j*64}")
        ld(0,0)
        for j in range(14):
            st=j&1
            if j<13: ld(j+1, st^1); e("s_waitcnt vmcnt(4) lgkmcnt(8)")
            else: e("s_waitcnt vmcnt(0) lgkmcnt(0)")
            for i in range(8):
                for t in range(4):
                    a=(i*4+t)*4
                    w=f"v[{8+st*16+4*t}:{11+st*16+4*t}]"; x=f"v[{40+st*32+4*i}:{43+st*32+4*i}]"
                    A,B=(w,x) if sw else (x,w)
                    e(f"v_mfma_f32_16x16x32_bf16 a[{a}:{a+3}], {A}, {B}, a[{a}:{a+3}]")
        e("s_nop 7"); e("s_nop 7")
    body(True)
    e("s_lshl_b32 s17, s5, 7")
    e("v_add_u32 v104, s17, v1")
    e("s_cmp_ge_u32 s7, 56"); e("s_cbranch_scc1 K3_epG")
    e("v_mul_u32_u24 v104, 14336, v104")
    e("v_lshl_add_u32 v104, v2, 3, v104")
    e("s_lshl_b32 s17, s16, 1"); e(f"s_add_u32 s17, s17, {XA}")
    e("v_add_u32 v104, s17, v104")
    for i in range(8):
        for t in range(4):
            a=(i*4+t)*4
            for r in range(4): e(f"v_accvgpr_read_b32 v{106+r}, a{a+r}")
            e("v_cvt_pk_bf16_f32 v110, v106, v107"); e("v_cvt_pk_bf16_f32 v111, v108, v109")
            e(f"buffer_store_dwordx2 v[110:111], v104, s[8:11], 0 offen offset:{t*32} sc1")
            e("s_nop 1")
        e(f"v_add_u32 v104, {16*14336}, v104")
    e("s_branch K3_next")
    lab("K3_epG")
    e("s_sub_u32 s16, s16, 14336")
    e("v_mul_u32_u24 v104, 3584, v104")
    e("v_lshl_add_u32 v104, v2, 3, v104")
    e("s_lshl_b32 s17, s16, 1"); e(f"s_add_u32 s18, s17, {G}")
    e("v_add_u32 v104, s18, v104")
    e("v_lshlrev_b32 v105, 3, v2")
    for t in range(4): e(f"buffer_load_dwordx2 v[{112+2*t}:{113+2*t}], v105, s[12:15], s17 offen offset:{t*32}")
    e("s_waitcnt vmcnt(0)")
    for t in range(4):
        for q in range(2):
            e(f"v_lshlrev_b32 v{120+4*t+2*q}, 16, v{112+2*t+q}")
            e(f"v_and_b32 v{121+4*t+2*q}, 0xffff0000, v{112+2*t+q}")
    for i in range(8):
        for t in range(4):
            a=(i*4+t)*4
            for r in range(4):
                v=106+r
                e(f"v_accvgpr_read_b32 v{v}, a{a+r}")
                rnd(v)
                e(f"v_add_f32 v{v}, v{v}, v{120+4*t+r}")
                rnd(v)
                e(f"v_mul_f32 v136, v{v}, v{v}")
                e(f"v_fma_f32 v136, v136, s28, 1.0" if False else f"v_mul_f32 v136, 0x3d372713, v136")
                e(f"v_add_f32 v136, 1.0, v136")
                e(f"v_mul_f32 v136, v136, v{v}")
                e(f"v_mul_f32 v136, 0xc0135761, v136")
                e(f"v_exp_f32 v136, v136")
                e("s_nop 0")
                e(f"v_add_f32 v136, 1.0, v136")
                e(f"v_rcp_f32 v136, v136")
                e("s_nop 0")
                e(f"v_mul_f32 v{v}, v{v}, v136")
            e("v_cvt_pk_bf16_f32 v110, v106, v107"); e("v_cvt_pk_bf16_f32 v111, v108, v109")
            e(f"buffer_store_dwordx2 v[110:111], v104, s[8:11], 0 offen offset:{t*32} sc1")
            e("s_nop 1")
        e(f"v_add_u32 v104, {16*3584}, v104")
    e("s_branch K3_next")
    lab("K3_ns")
    body(False)
    e("s_sub_u32 s16, s16, 7168"); e("s_lshr_b32 s16, s16, 6")
    e(f"s_mul_hi_u32 s17, s16, {magic(7)}" if False else f"s_mov_b32 s18, {magic(7)}")
    e("s_mul_hi_u32 s17, s16, s18")
    e("s_mul_i32 s18, s17, 7"); e("s_sub_u32 s18, s16, s18"); e("s_lshl_b32 s18, s18, 2")
    e("s_lshl_b32 s19, s5, 2"); e("s_mul_i32 s19, s19, 28"); e("s_add_u32 s19, s19, s18")
    e("s_lshl_b32 s19, s19, 4"); e("s_add_u32 s19, s19, s17"); e("s_lshl_b32 s19, s19, 10")
    e(f"s_add_u32 s19, s19, {XBT}")
    e("v_lshlrev_b32 v104, 6, v1"); e("v_lshl_add_u32 v104, v2, 3, v104")
    for i in range(8):
        for t in range(4):
            a=(i*4+t)*4
            off=(i>>1)*28*16384 + t*16384 + (i&1)*32
            e(f"s_add_u32 s22, s19, {off}")
            for r in range(4): e(f"v_accvgpr_read_b32 v{106+r}, a{a+r}")
            e("v_cvt_pk_bf16_f32 v110, v106, v107"); e("v_cvt_pk_bf16_f32 v111, v108, v109")
            e(f"buffer_store_dwordx2 v[110:111], v104, s[8:11], s22 offen sc1")
            e("s_nop 1")
    lab("K3_next")
    e("s_waitcnt vmcnt(0)"); e("s_barrier")
    e("s_cmp_eq_u32 s4, 0"); e("s_cbranch_scc0 K3_nosig")
    e("v_cmp_eq_u32 vcc, 0, v0"); e("s_and_saveexec_b64 s[20:21], vcc")
    e("s_lshl_b32 s16, s5, 6"); e(f"s_add_u32 s16, s16, {CNT}")
    e("v_mov_b32 v104, 1"); e("v_mov_b32 v105, 0")
    e("buffer_atomic_add v104, v105, s[8:11], s16 offen sc1")
    e("s_mov_b64 exec, s[20:21]")
    lab("K3_nosig")
    e("s_add_u32 s5, s5, 3"); e("s_cmp_lt_u32 s5, 16"); e("s_cbranch_scc1 K3_mt")
    lab("K3_done")

def poll_mem(pfx, sslot):
    lab(f"{pfx}_poll")
    if pfx.startswith("K5"): e("s_sleep 8")
    for k in range(4):
        e(f"s_add_u32 s28, s{sslot}, s{34+k}")
        e(f"buffer_load_dwordx4 v[{4+4*k}:{7+4*k}], v2, s[8:11], s28 offen sc1")
    e("s_waitcnt vmcnt(0)")
    e("v_and_b32 v20, v4, v5")
    for k in range(2,16): e(f"v_and_b32 v20, v20, v{4+k}")
    e("v_and_b32 v20, 0xffff, v20")
    e(f"v_cmp_ne_u32 vcc, {TAG}, v20")
    e("s_add_u32 s42, s42, 1"); e("s_cmp_gt_u32 s42, 0x400000"); e("s_cbranch_scc1 %s_pout"%pfx)
    e("s_cbranch_vccnz %s_poll"%pfx)
    lab(pfx+"_pout")
    for k in range(4):
        e(f"v_perm_b32 v20, v{5+4*k}, v{4+4*k}, s29")
        e(f"v_perm_b32 v21, v{7+4*k}, v{6+4*k}, s29")
        e(f"v_add_u32 v22, s{38+k}, v3")
        e("ds_write_b64 v22, v[20:21]")

def cnt_poll(pfx, sseg):
    e(f"s_lshr_b32 s28, s{sseg}, 2"); e("s_lshl_b32 s28, s28, 6"); e(f"s_add_u32 s28, s28, {CNT}")
    e("v_mov_b32 v21, 0")
    lab(pfx+"_cp")
    if pfx.startswith("K5"): e("s_sleep 8")
    e("buffer_load_dword v20, v21, s[8:11], s28 offen sc1")
    e("s_waitcnt vmcnt(0)")
    e("v_cmp_ne_u32 vcc, 63, v20")
    e("s_add_u32 s42, s42, 1"); e("s_cmp_gt_u32 s42, 0x400000"); e(f"s_cbranch_scc1 {pfx}_cpo")
    e(f"s_cbranch_vccnz {pfx}_cp")
    lab(pfx+"_cpo")

def chain_common_setup():
    e("v_lshlrev_b32 v2, 4, v0")
    e("v_lshrrev_b32 v3, 3, v0"); e(f"v_mul_u32_u24 v3, {LROW}, v3")
    e("v_and_b32 v1, 7, v0"); e("v_lshl_add_u32 v3, v1, 3, v3")
    for k in range(4):
        e(f"s_add_u32 s{38+k}, s4, {4*k}")
        if k==3: e("s_min_u32 s41, s41, 13")
        e(f"s_lshl_b32 s{34+k}, s{38+k}, 10")
        e(f"s_lshl_b32 s{38+k}, s{38+k}, 6")
    e("s_mov_b32 s29, 0x07060302"); e("s_mov_b32 s42, 0")

def k4():
    kernel_begin("main_kernel")
    e("s_cmp_ge_u32 s2, 256")
    e("s_cbranch_scc1 K4_done")
    srd(8, 14, WS_SIZE)
    wave_id(4)
    e("s_waitcnt lgkmcnt(0)")
    e("s_cmp_ge_u32 s2, 44")
    e("s_cbranch_scc1 K3_entry")
    chain_common_setup()
    e("v_and_b32 v116, 15, v0"); e("v_lshrrev_b32 v117, 4, v0")
    e("s_waitcnt lgkmcnt(0)")
    e("s_cmp_ge_u32 s2, 16")
    e("s_cbranch_scc1 K4_B")
    def wreg(idx): return f"a[{4*idx}:{4*idx+3}]" if idx<64 else f"v[{120+4*(idx-64)}:{123+4*(idx-64)}]"
    e("s_mul_i32 s5, s2, 448"); e("s_mul_i32 s6, s4, 112"); e("s_add_u32 s5, s5, s6")
    e("v_add_u32 v20, s5, v116"); e("v_mul_u32_u24 v20, 896, v20")
    e("v_lshl_add_u32 v20, v117, 4, v20"); e(f"v_add_u32 v20, {WALL}, v20")
    for i in range(7):
        for j in range(14): e(f"buffer_load_dwordx4 {wreg(i*14+j)}, v20, s[8:11], 0 offen offset:{j*64}")
        e("v_add_u32 v20, 14336, v20")
    e(f"s_mov_b32 s30, {MEMS}")
    e("s_lshl_b32 s31, s4, 3"); e("s_mul_i32 s31, s31, 896")
    e(f"s_mul_i32 s32, s2, 640"); e(f"s_add_u32 s32, s32, {PS}")
    e("s_mov_b32 s33, 0")
    e("s_lshl_b32 s5, s4, 3"); e("s_add_u32 s5, s5, 8"); e(f"s_mul_i32 s5, s5, {LROW}")
    e("v_add_u32 v118, s5, v2")
    e("v_and_b32 v119, 7, v116"); e(f"v_mul_u32_u24 v119, {LROW}, v119"); e("v_lshl_add_u32 v119, v117, 4, v119")
    e(f"v_mul_u32_u24 v23, {LROW}, v116"); e("v_lshl_add_u32 v23, v117, 3, v23"); e("s_mul_i32 s5, s4, 224"); e("v_add_u32 v23, s5, v23")
    e("s_mul_i32 s5, s4, 1536"); e("s_add_u32 s5, s5, 45056")
    e("v_mul_u32_u24 v24, 192, v116"); e("v_lshl_add_u32 v24, v117, 4, v24"); e("v_add_u32 v24, s5, v24")
    e("v_lshrrev_b32 v26, 3, v0"); e("v_mul_u32_u24 v25, 192, v26"); e("v_lshl_add_u32 v25, v1, 5, v25"); e("v_add_u32 v25, 45056, v25")
    e("v_mul_u32_u24 v26, 80, v26"); e("v_lshl_add_u32 v26, v1, 4, v26")
    lab("K4A_loop")
    e("v_cmp_gt_u32 vcc, 56, v0"); e("s_and_saveexec_b64 s[20:21], vcc")
    e("s_mov_b32 s5, s31")
    for r in range(8):
        e(f"buffer_load_dwordx4 v[{32+4*r}:{35+4*r}], v2, s[8:11], s5 offen"); e("s_add_u32 s5, s5, 896")
    for r in range(8):
        e(f"s_waitcnt vmcnt({7-r})"); e(f"ds_write_b128 v118, v[{32+4*r}:{35+4*r}] offset:{r*LROW}")
    e("s_mov_b64 exec, s[20:21]")
    poll_mem("K4A", 30)
    e("s_waitcnt lgkmcnt(0)"); e("s_barrier")
    for j in range(14): e(f"ds_read_b128 v[{32+4*j}:{35+4*j}], v119 offset:{j*64}")
    for k in range(28): e(f"v_mov_b32 v{88+k}, 0")
    for j in range(14):
        e(f"s_waitcnt lgkmcnt({13-j})")
        for i in range(7): e(f"v_mfma_f32_16x16x32_bf16 v[{88+4*i}:{91+4*i}], {wreg(i*14+j)}, v[{32+4*j}:{35+4*j}], v[{88+4*i}:{91+4*i}]")
    for kt in range(3):
        for q in range(3):
            b=46+kt*14+q*4
            e(f"ds_read_b64 v[{b}:{b+1}], v23 offset:{kt*16*LROW+q*64}")
            e(f"ds_read_b64 v[{b+2}:{b+3}], v23 offset:{kt*16*LROW+q*64+32}")
        b=46+kt*14+12
        e(f"ds_read_b64 v[{b}:{b+1}], v23 offset:{kt*16*LROW+192}")
    e("s_nop 4")
    for i in range(7):
        e(f"v_cvt_pk_bf16_f32 v{32+2*i}, v{88+4*i}, v{89+4*i}"); e(f"v_cvt_pk_bf16_f32 v{33+2*i}, v{90+4*i}, v{91+4*i}")
    for k in range(12): e(f"v_mov_b32 v{4+k}, 0")
    e("s_waitcnt lgkmcnt(0)")
    for kt in range(3):
        for q in range(3):
            b=46+kt*14+q*4
            e(f"v_mfma_f32_16x16x32_bf16 v[{4+4*kt}:{7+4*kt}], v[{b}:{b+3}], v[{32+4*q}:{35+4*q}], v[{4+4*kt}:{7+4*kt}]")
        b=46+kt*14+12
        e(f"v_mfma_f32_16x16x16_bf16 v[{4+4*kt}:{7+4*kt}], v[{b}:{b+1}], v[44:45], v[{4+4*kt}:{7+4*kt}]")
    e("s_nop 7"); e("s_nop 1")
    e("v_cmp_gt_u32 vcc, 8, v116"); e("s_and_saveexec_b64 s[20:21], vcc")
    for kt in range(3): e(f"ds_write_b128 v24, v[{4+4*kt}:{7+4*kt}] offset:{kt*64}")
    e("s_mov_b64 exec, s[20:21]")
    e("s_waitcnt lgkmcnt(0)"); e("s_barrier")
    e("s_cmp_eq_u32 s4, 0"); e("s_cbranch_scc0 K4A_next")
    for w in range(4):
        e(f"ds_read_b128 v[{32+8*w}:{35+8*w}], v25 offset:{w*1536}"); e(f"ds_read_b128 v[{36+8*w}:{39+8*w}], v25 offset:{w*1536+16}")
    e("s_waitcnt lgkmcnt(0)")
    e("v_cmp_gt_u32 vcc, 5, v1")
    e("v_mov_b32 v21, 0xff800000")
    for k in range(8):
        e(f"v_add_f32 v{32+k}, v{32+k}, v{40+k}"); e(f"v_add_f32 v{48+k}, v{48+k}, v{56+k}"); e(f"v_add_f32 v{32+k}, v{32+k}, v{48+k}")
        e(f"v_cndmask_b32 v{32+k}, v21, v{32+k}, vcc")
    e("v_max_f32 v20, v32, v33")
    for k in range(2,8): e(f"v_max_f32 v20, v20, v{32+k}")
    swz_reduce("v_max_f32", 20, 22, (0x041F,0x081F,0x101F))
    e("v_mov_b32 v21, 0")
    for k in range(8):
        e(f"v_sub_f32 v{32+k}, v{32+k}, v20"); e(f"v_mul_f32 v{32+k}, 0x3db8aa3b, v{32+k}")
        e(f"v_exp_f32 v{32+k}, v{32+k}"); e("s_nop 0"); e(f"v_add_f32 v21, v21, v{32+k}")
    swz_reduce("v_add_f32", 21, 22, (0x041F,0x081F,0x101F))
    e("v_rcp_f32 v21, v21"); e("s_nop 0")
    for k in range(8): e(f"v_mul_f32 v{32+k}, v{32+k}, v21")
    for k in range(4):
        e(f"v_cvt_pk_bf16_f32 v{40+k}, v{32+2*k}, v{33+2*k}"); e(f"v_or_b32 v{40+k}, 0x80008000, v{40+k}")
    e("s_and_saveexec_b64 s[20:21], vcc")
    e("buffer_store_dwordx4 v[40:43], v26, s[8:11], s32 offen sc1")
    e("s_mov_b64 exec, s[20:21]")
    lab("K4A_next")
    e("s_add_u32 s30, s30, 14336"); e("s_add_u32 s31, s31, 28672"); e("s_add_u32 s32, s32, 10240")
    e("s_add_u32 s33, s33, 1"); e("s_cmp_lt_u32 s33, 64"); e("s_cbranch_scc1 K4A_loop")
    e("s_branch K4_done")
    lab("K4_B")
    e("s_sub_u32 s6, s2, 16")
    e("s_lshl_b32 s5, s4, 2"); e("s_mul_i32 s5, s5, 448"); e("s_lshl_b32 s7, s6, 4"); e("s_add_u32 s5, s5, s7"); e("s_add_u32 s5, s5, 7168")
    e("v_add_u32 v20, s5, v116"); e("v_mul_u32_u24 v20, 896, v20")
    e("v_lshl_add_u32 v20, v117, 4, v20"); e(f"v_add_u32 v20, {WALL}, v20")
    for i in range(4):
        for j in range(14): e(f"buffer_load_dwordx4 a[{4*(i*14+j)}:{4*(i*14+j)+3}], v20, s[8:11], 0 offen offset:{j*64}")
        e(f"v_add_u32 v20, {448*896}, v20")
    e(f"s_mov_b32 s30, {MEMS}")
    e("s_lshl_b32 s31, s6, 4"); e("s_lshl_b32 s5, s4, 2"); e("s_add_u32 s31, s31, s5"); e("s_lshl_b32 s7, s31, 8"); e("s_lshl_b32 s31, s31, 10")
    e(f"s_add_u32 s31, s31, {XBT}"); e(f"s_add_u32 s7, s7, {MEMB}")
    e("v_lshlrev_b32 v118, 6, v116"); e("v_lshl_add_u32 v118, v117, 4, v118")
    e("v_and_b32 v119, 7, v116"); e(f"v_mul_u32_u24 v23, 80, v119"); e(f"v_mul_u32_u24 v119, {LROW}, v119"); e("v_lshl_add_u32 v119, v117, 4, v119")
    e("v_lshl_add_u32 v24, v117, 4, v23"); e("v_add_u32 v24, 16, v24")
    e("v_mul_u32_u24 v25, 640, v117"); e("v_add_u32 v25, v25, v23")
    e("s_lshl_b32 s32, s4, 2"); e("s_mul_i32 s32, s32, 640"); e(f"s_add_u32 s32, s32, {PS}")
    e("s_lshl_b32 s5, s4, 10"); e("s_add_u32 s5, s5, 8192")
    e("v_lshlrev_b32 v28, 4, v116"); e("v_lshl_add_u32 v28, v117, 3, v28"); e("v_add_u32 v26, s5, v28")
    e("v_lshlrev_b32 v27, 4, v116"); e("v_lshl_add_u32 v27, v117, 8, v27"); e("v_add_u32 v27, s5, v27")
    e("s_lshl_b32 s5, s4, 9"); e("s_add_u32 s5, s5, 16384")
    e("v_lshlrev_b32 v29, 2, v116"); e("v_lshl_add_u32 v29, v117, 8, v29"); e("v_add_u32 v29, s5, v29")
    e("v_lshrrev_b32 v31, 2, v0"); e("v_and_b32 v21, 3, v0"); e("v_lshlrev_b32 v21, 4, v21")
    e("v_lshl_add_u32 v30, v31, 6, v21"); e("v_add_u32 v30, 16384, v30")
    e("v_lshl_add_u32 v31, v31, 7, v21")
    e("s_lshr_b32 s16, s6, 1"); e("s_lshl_b32 s16, s16, 10"); e("s_and_b32 s17, s6, 1"); e("s_lshl_b32 s17, s17, 6"); e("s_add_u32 s16, s16, s17")
    e(f"s_add_u32 s16, s16, {MEMS+14336}")
    e("s_mov_b32 s33, 0")
    lab("K4B_loop")
    cnt_poll("K4Bc", 33)
    for i in range(4): e(f"buffer_load_dwordx4 v[{96+4*i}:{99+4*i}], v118, s[8:11], s31 offen offset:{i*1024} sc1")
    poll_mem("K4B", 30)
    e("s_waitcnt lgkmcnt(0)"); e("s_barrier")
    for j in range(14): e(f"ds_read_b128 v[{32+4*j}:{35+4*j}], v119 offset:{j*64}")
    for k in range(16): e(f"v_mov_b32 v{120+k}, 0")
    for j in range(14):
        e(f"s_waitcnt lgkmcnt({13-j})")
        for i in range(4): e(f"v_mfma_f32_16x16x32_bf16 v[{120+4*i}:{123+4*i}], v[{32+4*j}:{35+4*j}], a[{4*(i*14+j)}:{4*(i*14+j)+3}], v[{120+4*i}:{123+4*i}]")
    e("s_nop 7"); e("s_nop 1")
    e("v_cmp_gt_u32 vcc, 2, v117"); e("s_and_saveexec_b64 s[20:21], vcc")
    for i in range(4):
        e(f"v_cvt_pk_bf16_f32 v{136+2*i}, v{120+4*i}, v{121+4*i}"); e(f"v_cvt_pk_bf16_f32 v{137+2*i}, v{122+4*i}, v{123+4*i}")
        e(f"ds_write_b64 v26, v[{136+2*i}:{137+2*i}] offset:{i*256}")
        e(f"buffer_store_dwordx2 v[{136+2*i}:{137+2*i}], v28, s[8:11], s7 offen offset:{i*256} sc1")
    e("s_mov_b64 exec, s[20:21]")
    e("s_waitcnt lgkmcnt(0)")
    e("ds_read_b128 v[112:115], v27")
    lab("K4B_pp")
    for i in range(4): e(f"buffer_load_dwordx4 v[{32+4*i}:{35+4*i}], v24, s[8:11], s32 offen offset:{i*640} sc1")
    e("buffer_load_dwordx4 v[48:51], v25, s[8:11], s32 offen sc1")
    e("s_waitcnt vmcnt(0)")
    e("v_and_b32 v20, v32, v33")
    for k in range(2,20): e(f"v_and_b32 v20, v20, v{32+k}")
    e("v_and_b32 v20, 0x80008000, v20")
    e("v_cmp_ne_u32 vcc, 0x80008000, v20")
    e("s_add_u32 s42, s42, 1"); e("s_cmp_gt_u32 s42, 0x400000"); e("s_cbranch_scc1 K4B_ppo")
    e("s_cbranch_vccnz K4B_pp")
    lab("K4B_ppo")
    for k in range(20): e(f"v_and_b32 v{32+k}, 0x7fff7fff, v{32+k}")
    for k in range(4): e(f"v_mov_b32 v{120+k}, 0")
    e("s_waitcnt lgkmcnt(0)"); e("s_nop 0")
    for i in range(4): e(f"v_mfma_f32_16x16x32_bf16 v[120:123], v[{32+4*i}:{35+4*i}], v[{96+4*i}:{99+4*i}], v[120:123]")
    e("v_mfma_f32_16x16x32_bf16 v[120:123], v[48:51], v[112:115], v[120:123]")
    e("s_nop 7"); e("s_nop 1")
    e("v_cmp_gt_u32 vcc, 2, v117"); e("s_and_saveexec_b64 s[20:21], vcc")
    for r in range(4): e(f"ds_write_b32 v29, v{120+r} offset:{r*64}")
    e("s_mov_b64 exec, s[20:21]")
    e("s_waitcnt lgkmcnt(0)"); e("s_barrier")
    e("s_cmp_eq_u32 s4, 0"); e("s_cbranch_scc0 K4B_next")
    e("v_cmp_gt_u32 vcc, 32, v0"); e("s_and_saveexec_b64 s[20:21], vcc")
    for w in range(4): e(f"ds_read_b128 v[{32+4*w}:{35+4*w}], v30 offset:{w*512}")
    e("s_waitcnt lgkmcnt(0)")
    for k in range(4):
        e(f"v_add_f32 v{32+k}, v{32+k}, v{36+k}"); e(f"v_add_f32 v{40+k}, v{40+k}, v{44+k}"); e(f"v_add_f32 v{32+k}, v{32+k}, v{40+k}")
        rnd(32+k); e(f"v_or_b32 v{32+k}, {TAG}, v{32+k}")
    e("buffer_store_dwordx4 v[32:35], v31, s[8:11], s16 offen sc1")
    e("s_mov_b64 exec, s[20:21]")
    lab("K4B_next")
    e("s_add_u32 s30, s30, 14336"); e("s_add_u32 s16, s16, 14336"); e(f"s_add_u32 s31, s31, {28*16384}")
    e(f"s_add_u32 s7, s7, {28*4096}"); e("s_add_u32 s32, s32, 10240")
    e("s_add_u32 s33, s33, 1"); e("s_cmp_lt_u32 s33, 64"); e("s_cbranch_scc1 K4B_loop")
    lab("K4_done")
    e("s_endpgm")

PL=45056
def k5():
    e("s_cmp_ge_u32 s2, 64")
    e("s_cbranch_scc1 K5_done")
    srd(12, 0, 1835008); srd(16, 11, 896); srd(24, 12, 1835008)
    chain_common_setup()
    e("v_and_b32 v116, 15, v0"); e("v_lshrrev_b32 v117, 4, v0")
    e("s_waitcnt lgkmcnt(0)")
    e("s_mul_i32 s31, s2, 28"); e("s_mul_i32 s6, s4, 7"); e("s_add_u32 s31, s31, s6"); e("s_lshl_b32 s32, s31, 12"); e("s_lshl_b32 s31, s31, 14")
    e(f"s_add_u32 s31, s31, {XBT}"); e(f"s_add_u32 s32, s32, {MEMB}")
    e("v_lshlrev_b32 v26, 6, v116"); e("v_lshl_add_u32 v26, v117, 4, v26")
    e("v_lshlrev_b32 v27, 4, v116"); e("v_lshl_add_u32 v27, v117, 8, v27")
    e("s_mul_i32 s6, s4, 112"); e("v_add_u32 v28, s6, v116"); e("v_mul_u32_u24 v28, 3584, v28"); e("v_lshl_add_u32 v28, v117, 4, v28"); e(f"v_add_u32 v28, {W2T}, v28")
    e("s_lshl_b32 s6, s2, 5"); e("v_add_u32 v29, s6, v116"); e("v_mul_u32_u24 v29, 3584, v29"); e("v_lshl_add_u32 v29, v117, 4, v29"); e(f"v_add_u32 v29, {G}, v29")
    e("v_mul_u32_u24 v30, 96, v116"); e(f"v_add_u32 v31, {PL}, v30"); e("v_lshl_add_u32 v30, v117, 4, v30"); e(f"v_add_u32 v30, {PL+16}, v30")
    e("v_mul_u32_u24 v20, 3072, v117"); e("v_add_u32 v31, v31, v20")
    steps_a=[('x',h) for h in range(16)]+[('m',j) for j in range(4)]
    steps_f=[('f',j) for j in range(56)]
    def ld(stp, st):
        kind,j=stp
        wb=32+st*36
        for ct in range(7):
            d=f"v[{wb+4*ct}:{wb+4*ct+3}]"
            if kind=='x':
                e(f"s_add_u32 s6, s31, {ct*16384+j*1024}"); e(f"buffer_load_dwordx4 {d}, v26, s[8:11], s6 offen sc1")
            elif kind=='m':
                e(f"s_add_u32 s6, s32, {ct*4096+j*1024}"); e(f"buffer_load_dwordx4 {d}, v27, s[8:11], s6 offen sc1")
            else:
                e(f"s_mov_b32 s6, {ct*16*3584+j*64}"); e(f"buffer_load_dwordx4 {d}, v28, s[8:11], s6 offen sc1")
        for qt in range(2):
            d=f"v[{wb+28+4*qt}:{wb+31+4*qt}]"
            if kind=='x': e(f"ds_read_b128 {d}, v30 offset:{j*3072+qt*1536}")
            elif kind=='m': e(f"ds_read_b128 {d}, v31 offset:{j*12288+qt*1536}")
            else:
                e(f"s_mov_b32 s6, {qt*16*3584+j*64}"); e(f"buffer_load_dwordx4 {d}, v29, s[8:11], s6 offen sc1")
    def RUN(steps):
        cnt=lambda k: 9 if k=='f' else 7
        ld(steps[0],0)
        for n,stp in enumerate(steps):
            st=n&1; wb=32+st*36
            if n+1<len(steps):
                ld(steps[n+1], st^1); e(f"s_waitcnt vmcnt({cnt(steps[n+1][0])}) lgkmcnt({0 if steps[n+1][0]=='f' else 2})")
            else: e("s_waitcnt vmcnt(0) lgkmcnt(0)")
            for ct in range(7):
                for qt in range(2):
                    a=(ct*2+qt)*4+(168 if stp[0]=='f' else 0)
                    e(f"v_mfma_f32_16x16x32_bf16 a[{a}:{a+3}], v[{wb+4*ct}:{wb+4*ct+3}], v[{wb+28+4*qt}:{wb+31+4*qt}], a[{a}:{a+3}]")
    for k in range(56): e(f"v_accvgpr_write_b32 a{168+k}, 0")
    cnt_poll("K5c", 2)
    RUN(steps_f)
    e("s_mul_i32 s30, s2, 14336"); e(f"s_add_u32 s30, s30, {MEMS+14336}")
    poll_mem("K5n", 30)
    e("s_waitcnt lgkmcnt(0)"); e("s_barrier")
    e("s_mul_i32 s30, s2, 14336"); e(f"s_add_u32 s30, s30, {MEMS}")
    poll_mem("K5", 30)
    e("s_lshl_b32 s5, s4, 3"); e("s_lshl_b32 s6, s2, 5"); e("s_add_u32 s6, s6, s5"); e("s_mul_i32 s6, s6, 896")
    e("s_add_u32 s5, s5, 8"); e(f"s_mul_i32 s5, s5, {LROW}"); e("v_add_u32 v118, s5, v2")
    e("v_cmp_gt_u32 vcc, 56, v0"); e("s_and_saveexec_b64 s[20:21], vcc")
    for r in range(8):
        e(f"buffer_load_dwordx4 v[{32+4*r}:{35+4*r}], v2, s[8:11], s6 offen"); e("s_add_u32 s6, s6, 896")
    for r in range(8):
        e(f"s_waitcnt vmcnt({7-r})"); e(f"ds_write_b128 v118, v[{32+4*r}:{35+4*r}] offset:{r*LROW}")
    e("s_mov_b64 exec, s[20:21]")
    e("s_waitcnt lgkmcnt(0)"); e("s_barrier")
    e(f"v_mul_u32_u24 v119, {LROW}, v116"); e("v_lshl_add_u32 v119, v117, 4, v119")
    for kt in range(3):
        for j in range(14):
            a=(kt*14+j)*4
            e(f"ds_read_b128 a[{a}:{a+3}], v119 offset:{kt*16*LROW+j*64}")
        e("s_waitcnt lgkmcnt(0)")
    e("s_lshl_b32 s6, s2, 5"); e("v_add_u32 v23, s6, v116"); e("v_mul_u32_u24 v23, 14336, v23")
    e("v_lshl_add_u32 v23, v117, 4, v23"); e("s_mul_i32 s6, s4, 3584"); e(f"s_add_u32 s6, s6, {XA}"); e("v_add_u32 v23, s6, v23")
    e(f"v_add_u32 v24, {16*14336}, v23")
    for kt in range(3):
        for r in range(4): e(f"v_lshl_add_u32 v{120+4*kt+r}, v117, 2, {16*kt+r}")
    e("v_add_u32 v132, 8, v116"); e("v_add_u32 v133, 24, v116")
    e("v_xor_b32 v134, 16, v0"); e("v_lshlrev_b32 v134, 2, v134"); e("v_xor_b32 v135, 32, v0"); e("v_lshlrev_b32 v135, 2, v135")
    e("v_mov_b32 v136, 0xff800000")
    e("s_mul_i32 s6, s4, 12288"); e(f"s_add_u32 s6, s6, {PL}")
    e("v_mul_u32_u24 v25, 96, v116"); e("v_lshl_add_u32 v25, v117, 3, v25"); e("v_add_u32 v25, s6, v25")
    for hh in range(4):
        for qt in range(2):
            for j in range(14): e(f"buffer_load_dwordx4 v[{140+(qt*14+j)*4}:{143+(qt*14+j)*4}], v{23+qt}, s[8:11], 0 offen offset:{hh*896+j*64} sc1")
        for qt in range(2):
            for k in range(12): e(f"v_mov_b32 v{32+k}, 0")
            e(f"s_waitcnt vmcnt({14-14*qt})")
            for j in range(14):
                for kt in range(3):
                    a=(kt*14+j)*4; b=140+(qt*14+j)*4
                    e(f"v_mfma_f32_16x16x32_bf16 v[{32+4*kt}:{35+4*kt}], a[{a}:{a+3}], v[{b}:{b+3}], v[{32+4*kt}:{35+4*kt}]")
            e("s_nop 7"); e("s_nop 1")
            for k in range(12):
                e(f"v_cmp_le_u32 vcc, v{120+k}, v{132+qt}"); e("s_nop 1")
                e(f"v_cndmask_b32 v{32+k}, v136, v{32+k}, vcc")
            e("v_max_f32 v20, v32, v33")
            for k in range(2,12): e(f"v_max_f32 v20, v20, v{32+k}")
            for a in (134,135):
                e(f"ds_bpermute_b32 v21, v{a}, v20"); e("s_waitcnt lgkmcnt(0)"); e("v_max_f32 v20, v20, v21")
            e("v_mov_b32 v21, 0")
            for k in range(12):
                e(f"v_sub_f32 v{32+k}, v{32+k}, v20"); e(f"v_mul_f32 v{32+k}, 0x3db8aa3b, v{32+k}")
                e(f"v_exp_f32 v{32+k}, v{32+k}"); e("s_nop 0"); e(f"v_add_f32 v21, v21, v{32+k}")
            for a in (134,135):
                e(f"ds_bpermute_b32 v22, v{a}, v21"); e("s_waitcnt lgkmcnt(0)"); e("v_add_f32 v21, v21, v22")
            e("v_rcp_f32 v21, v21"); e("s_nop 0")
            for k in range(12): e(f"v_mul_f32 v{32+k}, v{32+k}, v21")
            for kt in range(3):
                e(f"v_cvt_pk_bf16_f32 v{44+2*kt}, v{32+4*kt}, v{33+4*kt}"); e(f"v_cvt_pk_bf16_f32 v{45+2*kt}, v{34+4*kt}, v{35+4*kt}")
                if kt==2:
                    e("v_cmp_gt_u32 vcc, 2, v117"); e("s_and_saveexec_b64 s[20:21], vcc")
                e(f"ds_write_b64 v25, v[{44+2*kt}:{45+2*kt}] offset:{hh*3072+qt*1536+kt*32}")
            e("s_mov_b64 exec, s[20:21]")
    e("s_waitcnt lgkmcnt(0)"); e("s_barrier")
    for k in range(56): e(f"v_accvgpr_write_b32 a{k}, 0")
    RUN(steps_a)
    e("s_nop 7"); e("s_nop 7")
    e("s_mul_i32 s6, s4, 224"); e("v_lshlrev_b32 v24, 3, v117"); e("v_add_u32 v24, s6, v24")
    e("s_lshl_b32 s6, s2, 5"); e("v_add_u32 v23, s6, v116"); e("v_mul_u32_u24 v23, 896, v23"); e("v_add_u32 v23, v23, v24")
    for ct in range(7):
        e(f"buffer_load_dwordx2 v[32:33], v24, s[16:19], 0 offen offset:{ct*32}")
        for qt in range(2):
            e(f"s_mov_b32 s6, {qt*16*896+ct*32}")
            e(f"buffer_load_dwordx2 v[34:35], v23, s[12:15], s6 offen")
            e("s_waitcnt vmcnt(0)")
            a=(ct*2+qt)*4
            for r in range(4):
                src=32+r//2; xs=34+r//2
                op=(lambda d,s: f"v_lshlrev_b32 v{d}, 16, v{s}") if r%2==0 else (lambda d,s: f"v_and_b32 v{d}, 0xffff0000, v{s}")
                e(op(40,src)); e(op(41,xs))
                e(f"v_accvgpr_read_b32 v42, a{a+r}"); e(f"v_accvgpr_read_b32 v43, a{a+168+r}")
                rnd(42); rnd(43)
                e("v_add_f32 v43, v43, v40"); rnd(43)
                e("v_add_f32 v42, v42, v41"); rnd(42)
                e(f"v_add_f32 v{44+r}, v42, v43")
            e("v_cvt_pk_bf16_f32 v48, v44, v45"); e("v_cvt_pk_bf16_f32 v49, v46, v47")
            e("buffer_store_dwordx2 v[48:49], v23, s[24:27], s6 offen")
            e("s_nop 1")
    lab("K5_done")
    kernel_end("main_kernel", 512, 256)

k1(); k2(); k4(); k3(); k5()
launch=f"""; @launch kernel=prep_kernel grid=({K1_WGS},1,1) block=(256,1,1) lds=0
; @launch kernel=wprod_kernel grid=(128,1,1) block=(256,1,1) lds=0
; @launch kernel=main_kernel grid=(256,1,1) block=(256,1,1) lds={128*LROW}
"""
txt=HDR+launch+'.amdgcn_target "amdgcn-amd-amdhsa--gfx950"\n.text\n'+"\n".join(out)+'\n.section .rodata,"a"\n'+"\n".join(kds)+"\n"
open('cdna_kernels/%s.s'%NAME,'w').write(txt)
```
